```python
import torch

def _softmax(x, axis=-1):
    return torch.softmax(x, dim=axis)
def _gelu(x):
    return torch.nn.functional.gelu(x, approximate="tanh")
def _silu(x):
    return torch.nn.functional.silu(x)
def _sigmoid(x):
    return torch.sigmoid(x)
def _layernorm(x, axis=-1, eps=1e-5):
    m = x.mean(dim=axis, keepdim=True)
    v = x.var(dim=axis, keepdim=True, unbiased=False)
    return (x - m) / torch.sqrt(v + eps)
def _scatter_add(tgt, idx, src, axis=0):
    return tgt.clone().index_add_(axis, idx, src)
def _segment_sum(src, seg, n):
    out = torch.zeros((n,) + src.shape[1:], dtype=src.dtype)
    return out.index_add_(0, seg, src)
def _pad(x, pw):
    flat = tuple(v for pair in reversed(pw) for v in pair)
    return torch.nn.functional.pad(x, flat)

kernel_name = 'gated_mix__ssm_conv_s5__dense_activation_gelu__prompt'

def setup_inputs():

    _w = (lambda a: (lambda t: t.to(torch.bfloat16) if t.is_floating_point() else t)(torch.as_tensor(a)))
    def _A_setup():
        B, S, D = 1, 2048, 448
        P = D
        Lambda_re = -0.5 * (lambda _x: torch.exp(torch.as_tensor(_x)))((lambda *s: torch.randn(*s, dtype=torch.bfloat16) * 0.2)(P))
        Lambda_im = (lambda *s: torch.randn(*s, dtype=torch.bfloat16) * 0.8)(P) * 1.0
        B_re = (lambda *s: torch.randn(*s, dtype=torch.bfloat16) * 0.2)(P, D) * (D ** -0.5)
        B_im = (lambda *s: torch.randn(*s, dtype=torch.bfloat16) * 0.2)(P, D) * (D ** -0.5)
        C_re = (lambda *s: torch.randn(*s, dtype=torch.bfloat16) * 0.2)(D, P) * (P ** -0.5)
        C_im = (lambda *s: torch.randn(*s, dtype=torch.bfloat16) * 0.2)(D, P) * (P ** -0.5)
        log_dt = (lambda *s: torch.randn(*s, dtype=torch.bfloat16) * 0.2)(P) * 0.3 - 2.0
        Dskip = (lambda *s: torch.randn(*s, dtype=torch.bfloat16) * 0.05)(D)
        return {
            "x": _w((lambda *s: torch.randn(*s, dtype=torch.bfloat16) * 0.05)(B, S, D)),
            "Lambda_re": _w(Lambda_re),
            "Lambda_im": _w(Lambda_im),
            "B_re": _w(B_re),
            "B_im": _w(B_im),
            "C_re": _w(C_re),
            "C_im": _w(C_im),
            "log_dt": _w(log_dt),
            "Dskip": _w(Dskip),
        }
    _A_in = _A_setup()

    def _B_setup():
        B, S, D, F = 1, 2048, 448, 1792
        return {
            "x": _w((lambda *s: torch.randn(*s, dtype=torch.bfloat16) * 0.05)(B, S, D)),
            "w1": _w((lambda *s: torch.randn(*s, dtype=torch.bfloat16) * 3.2)(D, F) * (D ** -0.5)),
            "b1": _w((lambda *s: torch.randn(*s, dtype=torch.bfloat16) * 3.2)(F) * 0.01),
            "w2": _w((lambda *s: torch.randn(*s, dtype=torch.bfloat16) * 0.1)(F, D) * (F ** -0.5)),
            "b2": _w((lambda *s: torch.randn(*s, dtype=torch.bfloat16) * 0.2)(D) * 0.01),
        }
    _B_in = _B_setup()

    return {
        "A_x": _A_in["x"],
        "A_Lambda_re": _A_in["Lambda_re"],
        "A_Lambda_im": _A_in["Lambda_im"],
        "A_B_re": _A_in["B_re"],
        "A_B_im": _A_in["B_im"],
        "A_C_re": _A_in["C_re"],
        "A_C_im": _A_in["C_im"],
        "A_log_dt": _A_in["log_dt"],
        "A_Dskip": _A_in["Dskip"],
        "B_x": _B_in["x"],
        "B_w1": _B_in["w1"],
        "B_b1": _B_in["b1"],
        "B_w2": _B_in["w2"],
        "B_b2": _B_in["b2"],
        "gate_w": _w((lambda *s: torch.randn(*s, dtype=torch.bfloat16) * 0.05)(448) * 16.0),
    }

def reference(A_x, A_Lambda_re, A_Lambda_im, A_B_re, A_B_im, A_C_re, A_C_im, A_log_dt, A_Dskip, B_x, B_w1, B_b1, B_w2, B_b2, gate_w):
    def _A_ref(x, Lambda_re, Lambda_im, B_re, B_im, C_re, C_im, log_dt, Dskip):
        Bsz, L, H = x.shape
        Lam = Lambda_re + 1j * Lambda_im
        Bmat = B_re + 1j * B_im
        Cmat = C_re + 1j * C_im
        dt = torch.exp(log_dt)
        Lam_bar = torch.exp(dt * Lam)
        B_bar = ((Lam_bar - 1.0) / Lam)[:, None] * Bmat
        Bu = torch.einsum("bld,pd->blp", x + 0j, B_bar)
        h = torch.zeros_like(Bu[:, 0, :])
        hs = []
        for t in range(L):
            h = Lam_bar[None, :] * h + Bu[:, t, :]
            hs.append(h)
        hseq = torch.stack(hs, 1)
        y = 2.0 * torch.einsum("blp,dp->bld", hseq, Cmat).real + x * Dskip[None, None, :]
        return y

    def _B_ref(x, w1, b1, w2, b2):
        h = torch.einsum("bsd,df->bsf", x, w1) + b1
        h = _gelu(h)
        return torch.einsum("bsf,fd->bsd", h, w2) + b2

    x = A_x
    g = _sigmoid((x * gate_w).sum(-1, keepdims=True))
    a = _A_ref(x, A_Lambda_re, A_Lambda_im, A_B_re, A_B_im, A_C_re, A_C_im, A_log_dt, A_Dskip)
    b = _B_ref(x, B_w1, B_b1, B_w2, B_b2)
    return g * a + (1 - g) * b
```

```python
import re

def regs(tok):
    tok = tok.strip()
    tok = tok.lstrip('-')
    if tok.startswith('|') and tok.endswith('|'): tok = tok[1:-1]
    m = re.fullmatch(r'([vas])\[(\d+):(\d+)\]', tok)
    if m: return {(m.group(1), i) for i in range(int(m.group(2)), int(m.group(3)) + 1)}
    m = re.fullmatch(r'([vas])(\d+)', tok)
    if m: return {(m.group(1), int(m.group(2)))}
    if tok in ('vcc', 'exec', 'm0'): return {(tok, 0)}
    return set()

TRANS = ('v_exp_f32', 'v_log_f32', 'v_rcp_f32', 'v_rsq_f32', 'v_sqrt_f32', 'v_sin_f32', 'v_cos_f32')

class I:
    __slots__ = ('text', 'op', 'kind', 'reads', 'writes', 'deps', 'srcc', 'ab', 'dpp', 'data', 'tag', 'alt')
    def __init__(self, text, deps=(), tag=None):
        self.text = text; self.deps = list(deps); self.tag = tag; self.alt = None
        self.srcc = set(); self.ab = set(); self.dpp = set(); self.data = set()
        t = text.split(';')[0].strip()
        if t.endswith(':'):
            self.op = 'label'; self.kind = 'label'; self.reads = set(); self.writes = set(); return
        parts = t.split(None, 1)
        op = self.op = parts[0]
        rest = parts[1] if len(parts) > 1 else ''
        ops = [o.strip() for o in re.split(r',(?![^\[]*\])', rest)] if rest else []
        toks = []
        for o in ops:
            toks.append(o.split()[0] if o.split() else o)
        mods = rest
        R = lambda lst: set().union(*[regs(x) for x in lst]) if lst else set()
        self.reads = set(); self.writes = set()
        if op.startswith('v_mfma'):
            self.kind = 'mfma'; self.writes = regs(toks[0]); self.ab = R(toks[1:3]); self.srcc = regs(toks[3])
            self.reads = self.ab | self.srcc
        elif op.startswith('v_cmp'):
            self.kind = 'valu'; self.writes = regs(toks[0]); self.reads = R(toks[1:])
        elif op.startswith('v_permlane32_swap') or op.startswith('v_permlane16_swap') or op.startswith('v_swap'):
            self.kind = 'valu'; self.writes = R(toks[:2]); self.reads = R(toks[:2]); self.dpp = R(toks[:2])
        elif op.startswith('v_'):
            base = op.replace('_e32', '').replace('_e64', '').replace('_dpp', '')
            self.kind = 'trans' if base in TRANS else 'valu'
            self.writes = regs(toks[0]); self.reads = R(toks[1:])
            if base.startswith(('v_fmac', 'v_dot2c', 'v_pk_fmac')): self.reads |= self.writes
            if base.startswith(('v_add_co', 'v_sub_co', 'v_addc_co', 'v_subb_co')):
                self.writes |= regs(toks[1])
            if base == 'v_cndmask_b32' and len(toks) == 3: self.reads |= {('vcc', 0)}
            if op.endswith('_dpp'):
                self.dpp = regs(toks[1])
        elif op.startswith('ds_read') or op.startswith('ds_bpermute') or op.startswith('ds_swizzle'):
            self.kind = 'ds_read'; self.writes = regs(toks[0]); self.reads = R(toks[1:])
        elif op.startswith('ds_write'):
            self.kind = 'ds_write'; self.reads = R(toks)
        elif op.startswith('buffer_load') or op.startswith('global_load'):
            if re.search(r'\blds\b', mods) or '_lds_' in op:
                self.kind = 'dma'; self.reads = R(toks) | {('m0', 0)}
            else:
                self.kind = 'vload'; self.writes = regs(toks[0]); self.reads = R(toks[1:])
        elif op.startswith('buffer_store'):
            self.kind = 'vstore'; self.reads = R(toks); self.data = regs(toks[0])
        elif op.startswith('global_store'):
            self.kind = 'vstore'; self.reads = R(toks); self.data = regs(toks[1])
        elif op.startswith(('s_load', 's_memtime', 's_memrealtime')):
            self.kind = 'smem'; self.writes = regs(toks[0]); self.reads = R(toks[1:])
        elif op == 's_barrier': self.kind = 'barrier'
        elif op == 's_waitcnt': self.kind = 'wait'
        elif op == 's_nop': self.kind = 'nop'
        elif op.startswith(('s_cbranch', 's_branch', 's_endpgm', 's_sleep', 's_setprio')):
            self.kind = 'branch'
            if 'vcc' in op: self.reads = {('vcc', 0)}
        elif op.startswith('s_cmp') or op.startswith('s_bitcmp'):
            self.kind = 'salu'; self.reads = R(toks)
        elif op.startswith('s_'):
            self.kind = 'salu'; self.writes = regs(toks[0]); self.reads = R(toks[1:])
            if op in ('s_addk_i32', 's_mulk_i32'): self.reads |= self.writes
            if 'saveexec' in op: self.writes |= {('exec', 0)}; self.reads |= {('exec', 0)}
        else:
            raise ValueError('unknown instruction ' + text)

VM = ('dma', 'vload', 'vstore')
LG = ('ds_read', 'ds_write', 'smem')

def add_waits(seq, check_left=None):
    out = []; vm = []; lg = []
    for ins in seq:
        if ins.kind == 'wait':
            m = re.search(r'vmcnt\((\d+)\)', ins.text)
            if m:
                n = int(m.group(1)); vm = vm[len(vm) - n:] if n < len(vm) else vm
                if n == 0: vm = []
            m = re.search(r'lgkmcnt\((\d+)\)', ins.text)
            if m:
                n = int(m.group(1))
                if n == 0: lg = []
                elif not any(x.kind == 'smem' for x in lg): lg = lg[len(lg) - n:] if n < len(lg) else lg
            out.append(ins); continue
        touch = ins.reads | ins.writes
        nv = None; nl = None
        for k, p in enumerate(vm):
            if (p.writes & touch) or any(p is d for d in ins.deps): nv = len(vm) - 1 - k
        for k, p in enumerate(lg):
            if (p.writes & touch) or any(p is d for d in ins.deps): nl = len(lg) - 1 - k
        if nl is not None and any(x.kind == 'smem' for x in lg): nl = 0
        if nv is not None or nl is not None:
            t = 's_waitcnt'
            if nv is not None:
                nv = min(nv, 63); t += ' vmcnt(%d)' % nv; vm = vm[len(vm) - nv:] if nv else []
            if nl is not None:
                nl = min(nl, 15); t += ' lgkmcnt(%d)' % nl; lg = lg[len(lg) - nl:] if nl else []
            out.append(I(t))
        out.append(ins)
        if ins.kind in VM:
            vm.append(ins)
            assert len(vm) <= 63, 'too many vm ops outstanding'
        if ins.kind in LG: lg.append(ins)
    return out

def isv(r): return r[0] in ('v', 'a')

def need_states(p, c):
    n = 0
    pv = p.kind in ('valu', 'trans')
    cv = c.kind in ('valu', 'trans')
    if pv:
        w = p.writes
        wv = {r for r in w if isv(r)}; ws = w - wv
        if c.kind == 'mfma' and (wv & c.reads): n = max(n, 2)
        if cv and (wv & c.dpp): n = max(n, 2)
        if c.op.startswith(('v_readfirstlane', 'v_readlane')) and (wv & c.reads): n = max(n, 1)
        if p.kind == 'trans' and cv and (wv & c.reads): n = max(n, 1)
        if cv and (ws & c.reads): n = max(n, 2)
        if c.kind in VM and (ws & c.reads): n = max(n, 5)
        if p.op.startswith('v_dot2') and c.op != p.op and (wv & (c.reads | c.writes)): n = max(n, 3)
    if p.kind == 'mfma':
        if c.kind == 'mfma':
            if p.writes & c.ab: n = max(n, 12)
            if (p.writes & c.srcc) and p.writes != c.srcc: n = max(n, 10)
            if (p.writes & c.writes) and c.srcc != p.writes: n = max(n, 10)
        elif c.kind in ('valu', 'trans', 'ds_read', 'ds_write', 'vload', 'vstore', 'dma'):
            if p.writes & (c.reads | c.writes): n = max(n, 12)
            if cv and (p.srcc & c.writes): n = max(n, 7)
            if c.kind in ('ds_read', 'vload') and (p.srcc & c.writes): n = max(n, 7)
    if p.kind == 'salu' and ('m0', 0) in p.writes and c.kind == 'dma': n = max(n, 1)
    if p.kind == 'vstore' and len(p.data) >= 3 and (p.data & c.writes): n = max(n, 2)
    if p.kind == 'ds_write' and cv and (p.reads & c.writes): n = max(n, 1)
    return n

def add_nops(seq):
    out = []
    for ins in seq:
        if ins.kind == 'label':
            out.append(ins); continue
        need = 0; dist = 0
        for p in reversed(out):
            if p.kind == 'label': continue
            k = need_states(p, ins)
            if k > dist: need = max(need, k - dist)
            dist += (int(p.text.split()[1]) + 1) if p.kind == 'nop' else 1
            if dist >= 13: break
        while need > 0:
            k = min(need, 16); out.append(I('s_nop %d' % (k - 1))); need -= k
        out.append(ins)
    return out

def finish(seq):
    return add_nops(add_waits(seq))
```

```python
import sys, json, math, struct
from asmgen import I, finish

KNAME = 'gated_mix__ssm_conv_s5__dense_activation_gelu__prompt_kernel'
RING = 24576; XH = 98304; HF = XH; HIMG = XH + 32768; MISC = XH + 57344
ZBUF = MISC; G2BUF = MISC + 1024; LDS_BYTES = MISC + 2048
WS_ST = 4096; WS_IN = 1 << 20; WS_DIAG = 24 << 20
def f2u(x): return struct.unpack('<I', struct.pack('<f', x))[0]

DEF = dict(diag=0, gather_k=13, check_k=21, bz_k=2, ahead0=0, spin=1 << 18, helper=1, poll=(5, 5, 5, 6, 6, 7),
           stflag='sc1', ldflag='sc1', outflag='')

def vr(a, n=1): return 'v%d' % a if n == 1 else 'v[%d:%d]' % (a, a + n - 1)
def ar(a, n=1): return 'a%d' % a if n == 1 else 'a[%d:%d]' % (a, a + n - 1)
def sr(a, n=1): return 's%d' % a if n == 1 else 's[%d:%d]' % (a, a + n - 1)
DPP = 'row_ror:8 row_mask:0xf bank_mask:0xf'

SX, SBR, SBI, SW1, SW2, SC, SST, SIN, SOUT = 40, 44, 48, 52, 56, 60, 64, 68, 72
sW, sS, sR, sRING, sXO, sBO, sW1O, sT0, sT1, sG, sW2B, sCB, sPUB, sT2 = range(76, 90)
sNONCE, sN3, sLO, sHI, sSPIN, sT3 = 90, 91, 92, 93, 94, 95
vL = 1
vE, vOx, vO, vB2, vB3, vC2, vC3 = 2, 3, 4, 5, 6, 7, 8
vW1, vW2 = 9, 13
aX, aB, aW1, aW2, aC = 17, 21, 25, 27, 29
aHI, aHW, aHR, aHS, vL16, vG0, vG1, vPB, aZW, aZR, aGW, aGR, vOUT, vXE, vDE = range(37, 52)
vGC, vIG, vG, vGM, vEXP = 52, 54, 56, 57, 58
T = 59
U = 64
def ACC(b, t): return 96 + (2 * b + t) * 16
FR = 160
GA = 192
cA, cSB, c16, c32, c64, c128, cCO, cMU = 224, 225, 226, 228, 230, 232, 234, 236
vZ0, vZ1, vT0 = 238, 239, 240
T2 = 241
def XA(kk, t): return (kk * 2 + t) * 4
ZA = 224
P2 = (64, 80); PK = (96, 108); PIN = 120; SUM = 192; RAW = 208
HFR = 0; FIFO = 96; NFIFO = 40

class Gen:
    def __init__(self, **kw):
        self.p = dict(DEF); self.p.update(kw)
        self.seq = []; self.tail = []; self.nstamp = 0

    def e(self, text, deps=(), tag=None):
        last = None
        for t in text.split('\n'):
            t = t.strip()
            if t:
                last = I(t, deps, tag); self.seq.append(last)
        return last

    STAMPS = [4, 6, 8, 10, 12, 14, 16, 18, 22, 24, 26, 28]
    def stamp(self):
        if not self.p['diag']: return []
        r = self.STAMPS[self.nstamp]; self.nstamp += 1
        return [I('s_memtime %s' % sr(r, 2))]

    def weave(self, mf, pre, post, valu=None, budget=5):
        valu = valu if valu is not None else []
        for i, m in enumerate(mf):
            for x in pre.get(i, []): self.seq.append(x)
            self.seq.append(m)
            used = len(pre.get(i + 1, []))
            for x in post.get(i, []): self.seq.append(x); used += 1
            while valu and used < budget and valu[0][0] <= i:
                x = valu.pop(0)[1]
                if isinstance(x, list): self.seq += x; used += len(x)
                else: self.seq.append(x); used += 2 if x.kind == 'trans' else 1
        out = []
        for g, x in valu: out += [(g, y) for y in x] if isinstance(x, list) else [(g, x)]
        return out

    def fill(self, F):
        slot = F % 6; out = []; d = []
        if F < 7:
            cb = F
            if F == 6:
                out.append(I('s_add_u32 s%d, s%d, 768' % (sBO, sBO))); cb = 0
            out.append(I('s_add_u32 m0, s%d, %d' % (sRING, slot * 4096 - cb * 128)))
            for q, (v, srd) in enumerate(((vE, SBR), (vO, SBI), (vB2, SBR), (vB3, SBI))):
                d.append(I('buffer_load_dwordx4 v%d, %s, s%d offen offset:%d lds' % (v, sr(srd, 4), sBO, cb * 128 + q * 1024)))
        elif F < 21:
            n = F - 7
            out.append(I('s_add_u32 m0, s%d, %d' % (sRING, slot * 4096)))
            if n: out.append(I('s_add_u32 s%d, s%d, %d' % (sW1O, sW1O, 32 * 3584)))
            for q in range(4):
                d.append(I('buffer_load_dwordx4 v%d, %s, s%d offen offset:%d lds' % (vW1 + q, sr(SW1, 4), sW1O, q * 1024)))
        else:
            n = F - 21; ty = n % 3
            out.append(I('s_add_u32 m0, s%d, %d' % (sRING, slot * 4096)))
            if ty == 0:
                out.append(I('s_add_u32 s%d, s%d, 1' % (sG, sG)))
                out.append(I('s_cmp_eq_u32 s%d, 7' % sG))
                out.append(I('s_cselect_b32 s%d, 0, s%d' % (sG, sG)))
                out.append(I('s_mul_i32 s%d, s%d, 57344' % (sT0, sG)))
                out.append(I('s_add_u32 s%d, s%d, s%d' % (sT0, sT0, sCB)))
                for q, v in enumerate((vE, vOx, vC2, vC3)):
                    d.append(I('buffer_load_dwordx4 v%d, %s, s%d offen offset:%d lds' % (v, sr(SC, 4), sT0, q * 1024)))
            else:
                if ty == 1:
                    out.append(I('s_lshl_b32 s%d, s%d, 7' % (sT0, sG)))
                    out.append(I('s_add_u32 s%d, s%d, s%d' % (sT0, sT0, sW2B)))
                else:
                    out.append(I('s_add_u32 s%d, s%d, %d' % (sT0, sT0, 128 * 896)))
                for q in range(4):
                    d.append(I('buffer_load_dwordx4 v%d, %s, s%d offen offset:%d lds' % (vW2 + q, sr(SW2, 4), sT0, q * 1024)))
        self.fills[F] = d
        return out + d

    def cmul(self, dst, x, c, neg=False):
        return [I('v_fmac_f32 v%d, v%d, v%d' % (dst, c, x)),
                I('v_fmac_f32_dpp v%d, v%d, %sv%d %s' % (dst, x, '-' if neg else '', c + 1, DPP))]

    def srd(self, d, base, nbytes):
        self.e('s_mov_b32 s%d, s%d\ns_mov_b32 s%d, s%d\ns_mov_b32 s%d, %d\ns_mov_b32 s%d, 0x20000' % (d, base, d + 1, base + 1, d + 2, nbytes, d + 3))

    def build(self):
        p = self.p; e = self.e; self.fills = {}
        if p['diag']:
            e('s_memtime s[98:99]\ns_memrealtime s[100:101]')
        e('s_load_dwordx16 s[4:19], s[0:1], 0\ns_load_dwordx16 s[20:35], s[0:1], 64\ns_load_dwordx2 s[36:37], s[0:1], 136')
        e('s_cmp_ge_u32 s2, 256\ns_cbranch_scc1 L_exit')
        e('v_lshrrev_b32 v%d, 6, v0\nv_and_b32 v%d, 63, v0' % (T, vL))
        e('s_lshr_b32 s%d, s2, 3\ns_and_b32 s%d, s2, 1' % (sT0, sT1))
        e('v_readfirstlane_b32 s%d, v%d' % (sW, T))
        e('s_cmp_ge_u32 s%d, 28\ns_cbranch_scc1 %s' % (sT0, 'L_helper' if p['helper'] else 'L_exit'))
        e('s_lshl_b32 s%d, s%d, 2' % (sT1, sT1))
        e('s_and_b32 s%d, s2, 6\ns_lshl_b32 s%d, s%d, 2' % (sR, sR, sR))
        e('s_and_b32 s%d, s%d, 7\ns_add_u32 s%d, s%d, s%d' % (sT2, sT0, sR, sR, sT2))
        e('s_lshr_b32 s%d, s%d, 3\ns_add_u32 s%d, s%d, s%d' % (sS, sT0, sS, sS, sT1))
        e('s_cmp_ge_u32 s%d, 24\ns_cselect_b32 s%d, 3, s%d\ns_cselect_b32 s%d, s%d, 0' % (sT0, sS, sS, sT1, sT1))
        e('s_add_u32 s%d, s%d, s%d' % (sR, sR, sT1))
        e('v_lshrrev_b32 v%d, 3, v%d' % (T, vL))
        e('v_lshrrev_b32 v%d, 4, v%d' % (T + 1, vL))
        e('v_and_b32 v%d, 7, v%d' % (T + 2, vL))
        e('v_mul_u32_u24 v%d, 896, v%d' % (T + 3, T))
        e('v_xor_b32 v%d, v%d, v%d' % (T + 4, T + 2, T + 1))
        e('v_lshl_add_u32 v%d, v%d, 4, v%d' % (vE, T + 4, T + 3))
        e('v_xor_b32 v%d, 64, v%d' % (vO, vE))
        e('v_add_u32 v%d, 6144, v%d\nv_add_u32 v%d, 5120, v%d\nv_add_u32 v%d, 5120, v%d' % (vOx, vO, vB2, vE, vB3, vO))
        e('s_mul_i32 s%d, s%d, %d' % (sRING, sW, RING))
        e('s_lshl_b32 s%d, s%d, 2\ns_add_u32 s%d, s%d, s%d\ns_mul_i32 s%d, s%d, %d' % (sXO, sR, sXO, sXO, sW, sXO, sXO, 16 * 896))
        e('s_lshl_b32 s%d, s%d, 2\ns_add_u32 s%d, s%d, s%d' % (sT2, sS, sT2, sT2, sW))
        e('s_mul_i32 s%d, s%d, %d' % (sBO, sT2, 16 * 896))
        e('s_lshl_b32 s%d, s%d, 11\ns_add_u32 s%d, s%d, %d' % (sT1, sW, sT1, sT1, XH))
        e('s_mov_b32 s%d, %d\ns_mov_b32 s%d, 0x20000' % (SX + 2, 2048 * 896, SX + 3))
        e('s_mov_b32 s%d, %d\ns_mov_b32 s%d, 0x20000' % (SBR + 2, 448 * 896, SBR + 3))
        e('s_mov_b32 s%d, %d\ns_mov_b32 s%d, 0x20000' % (SBI + 2, 448 * 896 + 1024, SBI + 3))
        e('s_mov_b64 %s, s[4:5]\ns_mov_b64 %s, s[10:11]' % (sr(SX, 2), sr(SBR, 2)))
        e('s_sub_u32 s%d, s12, 1024\ns_subb_u32 s%d, s13, 0' % (SBI, SBI + 1))
        xd = {}
        def xfill(cb):
            e('s_add_u32 m0, s%d, %d' % (sT1, cb * 8192 - cb * 128))
            a = e('buffer_load_dwordx4 v%d, %s, s%d offen offset:%d lds' % (vE, sr(SX, 4), sXO, cb * 128))
            b = e('buffer_load_dwordx4 v%d, %s, s%d offen offset:%d lds' % (vOx, sr(SX, 4), sXO, cb * 128 + 1024))
            xd[cb] = [a, b]
        j, hi = T2, T2 + 1
        for cb in range(7):
            xfill(cb)
            if cb < 6: self.seq += self.fill(cb)
            if cb == 0:
                e('v_and_b32 v%d, 31, v%d\nv_lshrrev_b32 v%d, 5, v%d' % (j, vL, hi, vL))
                e('v_lshrrev_b32 v%d, 4, v%d\nv_and_b32 v%d, 7, v%d' % (T + 3, j, T + 4, j))
                e('v_lshl_add_u32 v%d, v%d, 3, v%d' % (T + 3, T + 3, T + 4))
                e('s_lshl_b32 s%d, s%d, 4' % (sT0, sT2))
                e('v_add_lshl_u32 v%d, v%d, s%d, 1' % (T + 3, T + 3, sT0))
                e('v_mov_b32 v%d, 0' % (T + 4))
                e('global_load_ushort v%d, v%d, s[18:19]' % (GA + 16, T + 3))
                e('global_load_ushort v%d, v%d, s[6:7]' % (GA + 17, T + 3))
                e('global_load_ushort v%d, v%d, s[8:9]' % (GA + 18, T + 3))
                e('global_load_dword v%d, v%d, s[36:37] sc1' % (GA + 19, T + 4))
        e('s_mul_i32 s%d, s%d, 224' % (sT0, sW))
        e('v_lshl_add_u32 v%d, v%d, 4, s%d' % (T + 3, hi, sT0))
        GW = [ACC(0, 1) + 4 * n if n < 4 else ACC(1, 1) + 4 * (n - 4) for n in range(7)]
        for n in range(7): e('global_load_dwordx4 %s, v%d, s[32:33] offset:%d' % (vr(GW[n], 4), T + 3, n * 32))
        e('s_lshl_b32 s%d, s%d, 7' % (sT0, sT2))
        e('v_lshl_add_u32 v%d, v%d, 5, s%d' % (T + 4, hi, sT0))
        for n in range(4): e('global_load_dwordx4 %s, v%d, s[26:27] offset:%d' % (vr(GA + 4 * n, 4), T + 4, (n >> 1) * 64 + (n & 1) * 16))
        self.seq += self.stamp()
        self.srd(SW1, 24, 448 * 3584); self.srd(SW2, 28, 1792 * 896); self.srd(SOUT, 34, 2048 * 1792)
        e('s_cmp_ge_u32 s%d, 2\ns_cselect_b32 s%d, s16, s14\ns_cselect_b32 s%d, s17, s15' % (sW, SC, SC + 1))
        e('s_mov_b32 s%d, %d\ns_mov_b32 s%d, 0x20000' % (SC + 2, 448 * 896, SC + 3))
        e('s_lshl_b32 s%d, s%d, 13\ns_add_u32 s%d, s%d, %d' % (sT0, sT2, sT0, sT0, WS_ST))
        e('s_add_u32 s%d, s36, s%d\ns_addc_u32 s%d, s37, 0\ns_mov_b32 s%d, 8192\ns_mov_b32 s%d, 0x20000' % (SST, sT0, SST + 1, SST + 2, SST + 3))
        e('s_mul_i32 s%d, s%d, 602112\ns_add_u32 s%d, s%d, %d' % (sT0, sR, sT0, sT0, WS_IN))
        e('s_add_u32 s%d, s36, s%d\ns_addc_u32 s%d, s37, 0\ns_mov_b32 s%d, 602112\ns_mov_b32 s%d, 0x20000' % (SIN, sT0, SIN + 1, SIN + 2, SIN + 3))
        e('s_lshl_b32 s%d, s%d, 7' % (sW1O, sT2))
        e('s_lshl_b32 s%d, s%d, 3\ns_add_u32 s%d, s%d, s%d\ns_mul_i32 s%d, s%d, %d' % (sW2B, sS, sW2B, sW2B, sW, sW2B, sW2B, 32 * 896))
        e('s_and_b32 s%d, s%d, 1\ns_mul_i32 s%d, s%d, %d\ns_lshl_b32 s%d, s%d, 7\ns_add_u32 s%d, s%d, s%d' % (sT3, sW, sCB, sT3, 32 * 896, sT0, sS, sCB, sCB, sT0))
        e('s_mov_b32 s%d, s%d' % (sG, sS))
        e('s_mov_b32 s%d, 0x3f80\ns_mov_b32 s%d, 0x3f800000\ns_mov_b32 s%d, %d' % (sLO, sHI, sSPIN, p['spin']))
        tau, sw, rr, t0, t1, t2 = T2 + 2, T2 + 3, T2 + 4, T2 + 5, T2 + 6, T2 + 7
        e('v_add_u32 v%d, 12288, v%d\nv_add_u32 v%d, 18432, v%d' % (vC2, vE, vC3, vO))
        e('v_and_b32 v%d, 3, v%d\nv_and_b32 v%d, 2, v%d\nv_lshlrev_b32 v%d, 1, v%d' % (t0, T, t1, T, t1, t1))
        e('v_xor_b32 v%d, v%d, v%d\nv_xor_b32 v%d, v%d, v%d\nv_lshlrev_b32 v%d, 4, v%d' % (t0, t0, t1, t0, t0, T + 2, t0, t0))
        e('v_mul_u32_u24 v%d, 3584, v%d\nv_add_u32 v%d, v%d, v%d' % (t1, T, vW1, t1, t0))
        e('v_mul_u32_u24 v%d, 896, v%d\nv_add_u32 v%d, v%d, v%d' % (t1, T, vW2, t1, t0))
        for q in range(1, 4):
            e('v_add_u32 v%d, %d, v%d\nv_add_u32 v%d, %d, v%d' % (vW1 + q, q * (28672 - 1024), vW1, vW2 + q, q * 6144, vW2))
        e('v_bfe_u32 v%d, v%d, 2, 1\nv_lshrrev_b32 v%d, 3, v%d\nv_and_b32 v%d, 3, v%d' % (t0, j, t1, j, tau, j))
        e('v_lshl_add_u32 v%d, v%d, 4, v%d\nv_lshl_add_u32 v%d, v%d, 2, v%d' % (tau, t0, tau, tau, t1, tau))
        e('v_bfe_u32 v%d, v%d, 1, 3' % (sw, tau))
        e('v_xor_b32 v%d, v%d, v%d\nv_lshlrev_b32 v%d, 4, v%d\nv_lshl_add_u32 v%d, v%d, 7, v%d' % (t0, hi, sw, t0, t0, t0, tau, t0))
        e('v_add_u32 v%d, %d, v%d' % (aX, XH, t0))
        for k in range(1, 4): e('v_xor_b32 v%d, %d, v%d' % (aX + k, k << 5, aX))
        e('v_bfe_u32 v%d, v%d, 1, 3\nv_xor_b32 v%d, v%d, v%d\nv_lshlrev_b32 v%d, 4, v%d' % (t0, j, t0, hi, t0, t0, t0))
        e('v_lshl_add_u32 v%d, v%d, 7, v%d\nv_add_u32 v%d, s%d, v%d' % (t0, j, t0, aB, sRING, t0))
        for k in range(1, 4): e('v_xor_b32 v%d, %d, v%d' % (aB + k, k << 5, aB))
        e('v_lshlrev_b32 v%d, 4, v%d\nv_lshl_add_u32 v%d, v%d, 7, v%d' % (t0, sw, t0, tau, t0))
        e('v_mul_u32_u24 v%d, %d, v%d\ns_mul_i32 s%d, s%d, %d' % (t1, 2 * RING, hi, sT0, sT3, RING))
        e('v_add3_u32 v%d, v%d, v%d, s%d' % (aC, t0, t1, sT0))
        for m in range(1, 8): e('v_xor_b32 v%d, %d, v%d' % (aC + m, m << 4, aC))
        e('v_bfe_u32 v%d, v%d, 2, 2' % (rr, vL))
        e('v_and_b32 v%d, 2, v%d\nv_lshlrev_b32 v%d, 1, v%d\nv_xor_b32 v%d, v%d, v%d' % (t0, rr, t0, t0, t0, t0, rr))
        e('v_and_b32 v%d, 1, v%d\nv_bfe_u32 v%d, v%d, 4, 1\nv_lshl_add_u32 v%d, v%d, 1, v%d' % (t1, vL, t2, vL, t1, t1, t2))
        e('v_xor_b32 v%d, v%d, v%d\nv_lshlrev_b32 v%d, 4, v%d\nv_lshl_add_u32 v%d, v%d, 7, v%d' % (t0, t0, t1, t0, t0, t0, rr, t0))
        e('v_bfe_u32 v%d, v%d, 1, 1\nv_lshl_add_u32 v%d, v%d, 3, v%d' % (t1, vL, t0, t1, t0))
        e('v_lshl_add_u32 v%d, v%d, 10, v%d' % (t1, hi, t0))
        e('v_add_u32 v%d, s%d, v%d\nv_xor_b32 v%d, 64, v%d' % (aW1, sRING, t1, aW1 + 1, aW1))
        e('s_lshr_b32 s%d, s%d, 1\ns_lshl_b32 s%d, s%d, 6' % (sT1, sW, sT0, sT1))
        e('v_xor_b32 v%d, s%d, v%d\nv_add_u32 v%d, %d, v%d' % (t1, sT0, t1, aHI, HIMG, t1))
        e('s_lshl_b32 s%d, s%d, 6' % (sT0, sT3))
        e('v_lshl_add_u32 v%d, v%d, 11, v%d\nv_xor_b32 v%d, s%d, v%d\nv_add_u32 v%d, %d, v%d' % (t1, hi, t0, aW2, sT0, t1, aW2 + 1, 2 * RING, aW2))
        e('v_lshlrev_b32 v%d, 4, v%d' % (vL16, vL))
        e('s_lshl_b32 s%d, s%d, 13\ns_add_u32 s%d, s%d, %d\nv_add_u32 v%d, s%d, v%d' % (sT0, sW, sT0, sT0, HF, aHW, sT0, vL16))
        e('s_lshl_b32 s%d, s%d, 10\ns_add_u32 s%d, s%d, %d\nv_add_u32 v%d, s%d, v%d' % (sT0, sT1, sT0, sT0, HF, aHR, sT0, vL16))
        e('v_and_b32 v%d, 3, v%d\nv_and_b32 v%d, 2, v%d\nv_lshlrev_b32 v%d, 1, v%d\nv_xor_b32 v%d, v%d, v%d' % (t0, j, t1, j, t1, t1, t0, t0, t1))
        e('v_lshlrev_b32 v%d, 1, v%d\nv_xor_b32 v%d, v%d, v%d\nv_lshlrev_b32 v%d, 4, v%d\nv_lshl_add_u32 v%d, v%d, 7, v%d' % (t1, hi, t0, t0, t1, t0, t0, t0, j, t0))
        e('s_lshl_b32 s%d, s%d, 12\ns_add_u32 s%d, s%d, %d\nv_add_u32 v%d, s%d, v%d' % (sT0, sW, sT0, sT0, HIMG, aHS, sT0, t0))
        e('s_sub_u32 s%d, 32, s%d\nv_add_u32 v%d, s%d, v%d\nv_lshlrev_b32 v%d, 3, v%d' % (sT0, sR, t0, sT0, hi, t1, j))
        e('v_lshl_add_u32 v%d, v%d, 8, v%d\nv_add_u32 v%d, 4096, v%d' % (vG0, t0, t1, vG1, vG0))
        e('s_sub_u32 s%d, 31, s%d\ns_lshl_b32 s%d, s%d, 8\nv_add_u32 v%d, s%d, v%d\nv_lshl_add_u32 v%d, v%d, 16, v%d' % (sT0, sR, sT0, sT0, t1, sT0, t1, vPB, hi, t1))
        e('v_lshl_add_u32 v%d, v%d, 5, v%d' % (t0, hi, tau))
        e('s_lshl_b32 s%d, s%d, 2\ns_add_u32 s%d, s%d, %d\nv_lshl_add_u32 v%d, v%d, 4, s%d' % (sT0, sW, sT0, sT0, ZBUF, aZW, t0, sT0))
        e('v_lshlrev_b32 v%d, 4, v%d\nv_add_u32 v%d, %d, v%d' % (t1, tau, aZR, ZBUF, t1))
        e('s_lshl_b32 s%d, s%d, 8\ns_add_u32 s%d, s%d, %d\nv_lshl_add_u32 v%d, v%d, 2, s%d\nv_lshl_add_u32 v%d, v%d, 6, s%d' % (sT0, sW, sT0, sT0, G2BUF, aGW, t0, sT0, aGR, hi, sT0))
        e('s_lshl_b32 s%d, s%d, 1\ns_add_u32 s%d, s%d, s%d\ns_lshl_b32 s%d, s%d, 5\nv_add_u32 v%d, s%d, v%d' % (sT0, sR, sT0, sT0, sT1, sT0, sT0, t0, sT0, tau))
        e('s_lshl_b32 s%d, s%d, 1\ns_add_u32 s%d, s%d, s%d\ns_lshl_b32 s%d, s%d, 6\nv_lshl_add_u32 v%d, v%d, 5, s%d' % (sT0, sS, sT0, sT0, sT3, sT0, sT0, vDE, hi, sT0))
        e('v_mul_u32_u24 v%d, 896, v%d\nv_add_u32 v%d, v%d, v%d\nv_lshlrev_b32 v%d, 1, v%d' % (t0, t0, vXE, t0, vDE, vOUT, vXE))
        c0 = -2.0 * math.sqrt(2.0 / math.pi) * math.log2(math.e)
        e('v_mov_b32 v%d, 0x%08x\nv_mov_b32 v%d, 0x%08x' % (vGC, f2u(c0 * 0.044715), vGC + 1, f2u(c0)))
        self.seq += self.stamp()
        keep = self.seq; self.seq = []
        LD, LR, LI = GA + 16, GA + 17, GA + 18
        e('v_lshlrev_b32 v%d, 16, v%d\nv_lshlrev_b32 v%d, 16, v%d\nv_lshlrev_b32 v%d, 16, v%d' % (LD, LD, LR, LR, LI, LI))
        e('v_readfirstlane_b32 s%d, v%d' % (sNONCE, GA + 19))
        e('v_mul_f32 v%d, 0x%08x, v%d\nv_exp_f32 v%d, v%d' % (LD, f2u(math.log2(math.e)), LD, LD, LD))
        e('s_add_u32 s%d, s%d, 1\ns_mul_i32 s%d, s%d, 3' % (sNONCE, sNONCE, sN3, sNONCE))
        e('v_cvt_pk_bf16_f32 v%d, v%d, v%d\nv_and_b32 v%d, 0xffff0000, v%d' % (LD, LD, LD, LD, LD))
        e('v_mul_f32 v%d, v%d, v%d\nv_mul_f32 v%d, v%d, v%d' % (t0, LD, LR, t1, LD, LI))
        e('v_mul_f32 v%d, 0x%08x, v%d\nv_mul_f32 v%d, 0.15915494, v%d' % (t0, f2u(math.log2(math.e)), t0, t1, t1))
        e('v_exp_f32 v%d, v%d\nv_rndne_f32 v%d, v%d\nv_sub_f32 v%d, v%d, v%d' % (t0, t0, t2, t1, t1, t1, t2))
        e('v_cos_f32 v%d, v%d\nv_sin_f32 v%d, v%d' % (t2, t1, t1, t1))
        e('v_mul_f32 v%d, v%d, v%d\nv_mul_f32 v%d, v%d, v%d' % (cA, t0, t2, t1, t0, t1))
        sg = T2 + 8
        e('v_lshlrev_b32 v%d, 28, v%d\nv_and_b32 v%d, 0x80000000, v%d\nv_xor_b32 v%d, v%d, v%d' % (sg, j, sg, sg, cSB, sg, t1))
        e('v_mul_f32 v%d, v%d, v%d\nv_fmac_f32 v%d, v%d, v%d\nv_rcp_f32 v%d, v%d' % (t0, LR, LR, t0, LI, LI, t0, t0))
        e('v_add_f32 v%d, -1.0, v%d' % (t2, cA))
        e('v_mul_f32 v%d, v%d, v%d\nv_fmac_f32 v%d, v%d, v%d' % (cCO, t2, LR, cCO, t1, LI))
        e('v_mul_f32 v%d, v%d, v%d\nv_fma_f32 v%d, -v%d, v%d, v%d' % (cCO + 1, t2, LI, cCO + 1, t1, LR, cCO + 1))
        e('v_mul_f32 v%d, v%d, v%d\nv_mul_f32 v%d, v%d, v%d\nv_xor_b32 v%d, v%d, v%d' % (cCO, cCO, t0, cCO + 1, cCO + 1, t0, cCO, sg, cCO))
        def sq(d, s):
            e('v_mul_f32 v%d, v%d, v%d\nv_add_f32 v%d, v%d, v%d' % (t0, s + 1, s + 1, t2, s, s))
            e('v_fma_f32 v%d, v%d, v%d, -v%d\nv_mul_f32 v%d, v%d, v%d' % (d, s, s, t0, d + 1, t2, s + 1))
        sq(c16, cA); sq(c32, c16); sq(c16, c32); sq(c64, c16);
        e('v_mov_b32 v%d, v%d\nv_mov_b32 v%d, v%d' % (c16, c64, c16 + 1, c64 + 1))
        sq(c32, c16); sq(c64, c32); sq(c128, c64)
        e('v_cmp_eq_u32 vcc, 0, v%d' % hi)
        e('v_cndmask_b32 v%d, v%d, 1.0, vcc\nv_cndmask_b32 v%d, v%d, 0, vcc' % (cMU, c16, cMU + 1, c16 + 1))
        e('s_add_u32 s%d, s%d, 1\nv_sub_u32 v%d, s%d, v%d\nv_lshrrev_b32 v%d, 1, v%d\nv_mul_lo_u32 v%d, v%d, s%d' % (sT0, sR, t0, sT0, hi, t0, t0, vEXP, t0, sNONCE))
        VS = [(4, x) for x in self.seq]; self.seq = []
        for b in range(2):
            for k in range(8):
                e('v_lshlrev_b32 v%d, 16, v%d\nv_and_b32 v%d, 0xffff0000, v%d' % (ACC(b, 0) + 2 * k, GA + 8 * b + k, ACC(b, 0) + 2 * k + 1, GA + 8 * b + k))
        VS += [(41, x) for x in self.seq]; self.seq = keep

        def sreads(cb):
            o = []
            for kq in range(4):
                o.append(I('ds_read_b128 %s, v%d offset:%d' % (vr(FR + (cb & 1) * 16 + 4 * kq, 4), aB + kq, (cb % 6) * 4096)))
            for kq in range(4):
                for t in range(2):
                    o.append(I('ds_read_b128 %s, v%d offset:%d' % (ar(XA(4 * cb + kq, t), 4), aX + kq, cb * 8192 + t * 4096)))
            return o
        def wreads(kk):
            F = 7 + (kk >> 1); d = self.fills[F][2 * (kk & 1):2 * (kk & 1) + 2]
            base = FR + (kk % 3) * 8; off = (F % 6) * 4096 + (kk & 1) * 2048
            return [I('ds_read_b64_tr_b16 %s, v%d offset:%d' % (vr(base + 4 * b + 2 * h, 2), aW1 + b, off + 512 * h), deps=d)
                    for b in range(2) for h in range(2)]
        e('s_barrier', deps=xd[0] + self.fills[0])
        self.seq += self.stamp()
        rd = {0: sreads(0)}
        self.seq += rd[0]
        mf = []; pre = {}; post = {}
        for cb in range(7):
            for kq in range(4):
                for t in range(2):
                    c = '0' if (cb == 0 and kq == 0) else vr(U + 16 * t, 16)
                    mf.append(I('v_mfma_f32_32x32x16_bf16 %s, %s, %s, %s' % (vr(U + 16 * t, 16), ar(XA(4 * cb + kq, t), 4), vr(FR + (cb & 1) * 16 + 4 * kq, 4), c)))
            g0 = 8 * cb
            fl = self.fill(cb + 6)
            for x in fl:
                if x.kind == 'dma': x.deps += rd[cb][:4]
            if cb < 6:
                rd[cb + 1] = sreads(cb + 1)
                post[g0] = [I('s_barrier', deps=xd[cb + 1] + self.fills[cb + 1])] + rd[cb + 1][0:2]
                for k in range(5): post[g0 + 1 + k] = rd[cb + 1][2 + 2 * k:4 + 2 * k]
                nh = len(fl) - 4
                post[g0 + 1] = fl[:nh + 1] + post[g0 + 1]
                post[g0 + 3] = post[g0 + 3] + [fl[nh + 1]]
                post[g0 + 6] = [fl[nh + 2]]
                post[g0 + 7] = [fl[nh + 3]]
            else:
                nh = len(fl) - 4
                post[g0] = fl[:nh + 1]
                post[g0 + 2] = [fl[nh + 1]]; post[g0 + 4] = [fl[nh + 2]]; post[g0 + 6] = [fl[nh + 3]]
        left = self.weave(mf, pre, post, VS, budget=5)
        assert not left
        k = [i for i, x in enumerate(self.seq) if x is mf[-3]][0]
        keep = self.seq[k + 1:]; self.seq = self.seq[:k + 1]
        e('s_cmp_eq_u32 s%d, 1\ns_cbranch_scc1 L_z1\ns_cmp_eq_u32 s%d, 2\ns_cbranch_scc1 L_z2\ns_cmp_eq_u32 s%d, 3\ns_cbranch_scc1 L_z3' % (sW, sW, sW))
        e('L_z0:', tag='zbeg')
        self.seq += keep
        self.seq += self.stamp()

        wr = {0: wreads(0), 1: wreads(1)}
        hA, hB = T2, T2 + 2
        sc1 = []
        for r in range(1, 16):
            prev = [U + 16 * t if r == 1 else (hA, hB)[t] + ((r - 1) & 1) for t in range(2)]
            cur = [(hA, hB)[t] + (r & 1) for t in range(2)]
            for t in range(2): sc1.append(I('v_fma_f32 v%d, v%d, v%d, v%d' % (cur[t], cA, prev[t], U + 16 * t + r)))
            for t in range(2): sc1.append(I('v_fmac_f32_dpp v%d, v%d, -v%d %s' % (cur[t], prev[t], cSB, DPP)))
        eA, eB = hA + 1, hB + 1
        mf = []
        for n in range(7):
            for t in range(2):
                m = I('v_mfma_f32_32x32x16_bf16 %s, %s, %s, %s' % (ar(ZA + 16 * t, 16), vr(GW[n], 4), ar(XA(n, t), 4), '0' if n == 0 else ar(ZA + 16 * t, 16)))
                m.alt = ['v_mfma_f32_32x32x16_bf16 %s, %s, %s, %s' % (ar(ZA + 16 * t, 16), vr(GW[n], 4), ar(XA(7 * w + n, t), 4), '0' if n == 0 else ar(ZA + 16 * t, 16)) for w in range(4)]
                mf.append(m)
        left = self.weave(mf, {}, {0: wr[0], 9: wr[1][:2], 11: wr[1][2:]}, [(1, x) for x in sc1], budget=5)
        e('L_zend:', tag='zend')

        V = [(0, x) for _, x in left]
        def add(k, lst): V.extend((4 * k, x) for x in lst)
        ta, tb = T2 + 4, T2 + 5
        seq = [I('v_mul_f32_dpp v%d, v%d, v%d %s' % (ta, eA, cCO + 1, DPP)), I('v_mul_f32_dpp v%d, v%d, v%d %s' % (tb, eB, cCO + 1, DPP)),
               I('v_fmac_f32 v%d, v%d, v%d' % (ta, cCO, eA)), I('v_fmac_f32 v%d, v%d, v%d' % (tb, cCO, eB)),
               I('v_accvgpr_read_b32 v%d, a%d' % (T, ZA)), I('v_accvgpr_read_b32 v%d, a%d' % (T + 1, ZA + 16)),
               I('v_permlane32_swap_b32 v%d, v%d' % (ta, tb)),
               I('v_cmp_gt_u32 vcc, 32, v%d' % vL), I('v_mov_b32 v%d, 0' % vZ0)]
        seq += self.cmul(tb, ta, c16)
        seq += [I('v_cndmask_b32 v%d, v%d, v%d, vcc' % (T, T + 1, T)), I('v_mov_b32 v%d, v%d' % (vT0, tb)), I('v_mov_b32 v%d, v%d' % (vZ1, ta))]
        zw = I('ds_write_b32 v%d, v%d' % (aZW, T))
        pe = T2 + 7 if (T2 + 7) % 2 == 0 else T2 + 6
        seq += [zw, I('v_permlane32_swap_b32 v%d, v%d' % (vT0, tb)), I('v_mov_b32 v%d, s%d' % (pe + 1, sNONCE)),
                I('v_mov_b32 v%d, v%d' % (pe, tb)), I('v_permlane32_swap_b32 v%d, v%d' % (vZ0, vZ1))]
        seq += self.cmul(pe, vT0, c32)
        seq += [I('buffer_store_dwordx2 %s, v%d, %s, 0 offen %s' % (vr(pe, 2), vPB, sr(SST, 4), p['stflag']))]
        add(0, seq)
        zr = GA
        seq = [I('s_barrier', deps=[zw]), I('ds_read_b128 %s, v%d' % (vr(zr, 4), aZR)), I('ds_read_b128 %s, v%d offset:512' % (vr(zr + 4, 4), aZR))]
        scal = []
        for t in range(2):
            for r in range(0, 16, 2):
                a, b = U + 16 * t + r, U + 16 * t + r + 1
                scal += [I('v_mul_f32_dpp v%d, v%d, v%d %s' % (T, a, cCO + 1, DPP)), I('v_mul_f32_dpp v%d, v%d, v%d %s' % (T + 1, b, cCO + 1, DPP)),
                         I('v_fma_f32 v%d, v%d, v%d, v%d' % (a, cCO, a, T)), I('v_fma_f32 v%d, v%d, v%d, v%d' % (b, cCO, b, T + 1))]
        seq += scal[:16]
        g = [zr + 8, zr + 9]; gm = [zr + 10, zr + 11]
        gs = []
        for st in range(12):
            for t in range(2):
                z = zr + 4 * t
                gs.append([
                    'v_add_f32 v%d, v%d, v%d' % (z, z, z + 1), 'v_add_f32 v%d, v%d, v%d' % (z + 2, z + 2, z + 3),
                    'v_add_f32 v%d, v%d, v%d' % (z, z, z + 2), 'v_cvt_pk_bf16_f32 v%d, v%d, v%d' % (z, z, z),
                    'v_and_b32 v%d, 0xffff0000, v%d' % (z, z), 'v_mul_f32 v%d, 0x%08x, v%d' % (z, f2u(-math.log2(math.e)), z),
                    'v_exp_f32 v%d, v%d' % (z, z), 'v_add_f32 v%d, 1.0, v%d' % (z, z), 'v_rcp_f32 v%d, v%d' % (z, z),
                    'v_cvt_pk_bf16_f32 v%d, v%d, v%d' % (z, z, z), 'v_and_b32 v%d, 0xffff0000, v%d' % (g[t], z),
                    'v_sub_f32 v%d, 1.0, v%d' % (z, g[t])][st])
        for t in range(2): gs.append('v_cvt_pk_bf16_f32 v%d, v%d, v%d' % (zr + 4 * t, zr + 4 * t, zr + 4 * t))
        for t in range(2): gs.append('v_and_b32 v%d, 0xffff0000, v%d' % (gm[t], zr + 4 * t))
        for t in range(2): gs.append('v_max_f32 v%d, 0x%08x, v%d' % (zr + 4 * t, f2u(1e-30), gm[t]))
        for t in range(2): gs.append('v_rcp_f32 v%d, v%d' % (vIG + t, zr + 4 * t))
        gs.append('v_cndmask_b32 v%d, v%d, v%d, vcc' % (zr, g[1], g[0]))
        gs.append(['s_cmp_ge_u32 s%d, 2' % sW, 's_cselect_b64 vcc, -1, 0'])
        gs.append('v_add_f32 v%d, v%d, v%d' % (zr, zr, zr))
        gs.append('v_cndmask_b32 v%d, v%d, v%d, vcc' % (vG, g[0], g[1]))
        gs.append('v_cndmask_b32 v%d, v%d, v%d, vcc' % (vGM, gm[0], gm[1]))
        seq += [[I(y) for y in x] if isinstance(x, list) else I(x) for x in gs]
        gw_ = I('ds_write_b32 v%d, v%d' % (aGW, zr))
        seq += [gw_] + scal[16:]
        add(p['bz_k'], seq)
        def gloads():
            return [I('buffer_load_dwordx2 %s, v%d, %s, 0 offen offset:%d %s' % (vr(GA + 2 * q, 2), vG0 if q < 8 else vG1, sr(SST, 4), (q & 7) * 512, p['ldflag'])) for q in range(16)]
        def gcheck():
            o = [I('v_add3_u32 v%d, v%d, v%d, v%d' % (T, GA + 1, GA + 3, GA + 5)), I('v_add3_u32 v%d, v%d, v%d, v%d' % (T + 1, GA + 7, GA + 9, GA + 11))]
            for k in range(2):
                o += [I('v_add3_u32 v%d, v%d, v%d, v%d' % (T, T, GA + 13 + 8 * k, GA + 15 + 8 * k)), I('v_add3_u32 v%d, v%d, v%d, v%d' % (T + 1, T + 1, GA + 17 + 8 * k, GA + 19 + 8 * k))]
            o += [I('v_add3_u32 v%d, v%d, v%d, v%d' % (T, T, GA + 29, GA + 31)), I('v_add_u32 v%d, v%d, v%d' % (T, T, T + 1)),
                  I('v_cmp_ne_u32 vcc, v%d, v%d' % (T, vEXP))]
            return o
        add(p['gather_k'], gloads())
        seq = gcheck() + [I('s_cbranch_vccnz L_rs'), I('L_rs_back:')]
        self.tail += [I('L_rs:'), I('s_sub_u32 s%d, s%d, 1' % (sSPIN, sSPIN)), I('s_cbranch_scc1 L_rs_back')] + gloads() + gcheck() + \
                     [I('s_cbranch_vccnz L_rs'), I('s_branch L_rs_back')]
        for q in range(14, -1, -1): seq += self.cmul(GA + 2 * q, GA + 2 * q + 2, c128)
        cc, ct_ = T2 + 4, T2 + 5
        seq += [I('v_mov_b32 v%d, v%d' % (cc, GA)), I('v_mov_b32 v%d, v%d' % (ct_, GA))]
        g2r = [I('ds_read_b128 %s, v%d offset:%d' % (vr(GA + 16 * t + 4 * k, 4), aGR, 128 * t + 16 * k), deps=[gw_]) for t in range(2) for k in range(4)]
        seq += [I('v_permlane32_swap_b32 v%d, v%d' % (cc, ct_))] + g2r[:2]
        seq += self.cmul(cc, ct_, c64) + g2r[2:4]
        seq += self.cmul(vT0, cc, c32) + self.cmul(vZ0, cc, cMU) + g2r[4:6] + self.cmul(vZ1, vT0, cMU) + g2r[6:]
        for r in range(16):
            prev = [(vZ0, vZ1)[t] if r == 0 else U + 16 * t + r - 1 for t in range(2)]
            for t in range(2): seq.append(I('v_fmac_f32 v%d, v%d, v%d' % (U + 16 * t + r, cA, prev[t])))
            for t in range(2): seq.append(I('v_fmac_f32_dpp v%d, v%d, v%d %s' % (U + 16 * t + r, prev[t], cSB, DPP)))
        hw = []
        for t in range(2):
            for r in range(16): seq.append(I('v_mul_f32 v%d, v%d, v%d' % (GA + 16 * t + r, U + 16 * t + r, GA + 16 * t + r)))
            for k in range(8): seq.append(I('v_cvt_pk_bf16_f32 v%d, v%d, v%d' % (GA + 16 * t + k, GA + 16 * t + 2 * k, GA + 16 * t + 2 * k + 1)))
            for u in range(2):
                if t or u: seq.append(I('v_xor_b32 v%d, %d, v%d' % (T + 2 + u, (4 * t + u) << 4, aHS)))
                x = I('ds_write_b128 v%d, %s' % (T + 2 + u if (t or u) else aHS, vr(GA + 16 * t + 4 * u, 4))); hw.append(x); seq.append(x)
        add(p['check_k'], seq)

        mf = []; pre = {}; post = {}
        for kk in range(28):
            base = FR + (kk % 3) * 8
            for b in range(2):
                for t in ((1, 0) if kk == 0 else (0, 1)):
                    c = vr(ACC(b, 0), 16) if kk == 0 else vr(ACC(b, t), 16)
                    mf.append(I('v_mfma_f32_32x32x16_bf16 %s, %s, %s, %s' % (vr(ACC(b, t), 16), vr(base + 4 * b, 4), ar(XA(kk, t), 4), c)))
            g0 = 4 * kk
            for k in range(4): post[g0 + k] = []
            if kk & 1:
                fl = self.fill(7 + (kk >> 1) + 6); nh = len(fl) - 4
                for x in fl:
                    if x.kind == 'dma': x.deps += wr[kk]
                post[g0 + 2] += fl[:nh + 1]; post[g0 + 3] += [fl[nh + 1]]
                pend = fl[nh + 2:]
                if kk == 27: post[g0 + 3] += pend
            elif kk:
                post[g0 + 2] += [pend[0]]; post[g0 + 3] += [pend[1]]
            if kk + 2 < 28:
                wr[kk + 2] = wreads(kk + 2)
                post[g0] += wr[kk + 2][:2]; post[g0 + 1] += wr[kk + 2][2:]
        left = self.weave(mf, pre, post, V, budget=5)
        self.seq += self.stamp()
        self.seq += [x for _, x in left]
        self.seq += self.stamp()

        sreadsP = {}
        def preads(n):
            F = 21 + n; slot = F % 6; o = []
            for u in range(8):
                a = FIFO + ((8 * n + u) % NFIFO) * 4
                if n % 3 == 0:
                    o.append([I('ds_read_b128 %s, v%d offset:%d' % (ar(a, 4), aC + u, slot * 4096))])
                else:
                    reg = u >> 1; off = (reg & 1) * RING + slot * 4096 + (u & 1) * 1024
                    o.append([I('ds_read_b64_tr_b16 %s, v%d offset:%d' % (ar(a + 2 * h, 2), aW2 + (reg >> 1), off + 512 * h)) for h in range(2)])
            sreadsP[n] = [x for y in o for x in y]
            return o
        def stage_open(n, extra=()):
            deps = list(self.fills[21 + n]) + (sreadsP[n - 1] if n else []) + list(extra)
            o = [I('s_barrier', deps=deps)]
            fl = self.fill(21 + n + 5) if (n >= 1 and n + 5 < 21) else []
            return o, fl

        A0 = p['ahead0']
        gel = []
        TT = T2 + 1 if (T2 + 1) % 2 == 0 else T2
        OO = (FR, FR + 4)
        cnt = 0
        for b in range(2):
            for u in range(2):
                for t in range(2):
                    v = ACC(b, t) + 8 * u; o = OO[cnt & 1]; blk = []
                    pr = lambda x, k: vr(x + 2 * k, 2)
                    for k in range(4): blk.append(I('v_pk_mul_f32 %s, %s, %s' % (pr(TT, k), pr(v, k), pr(v, k))))
                    for k in range(4): blk.append(I('v_pk_fma_f32 %s, %s, %s, %s op_sel:[0,0,1] op_sel_hi:[1,0,1]' % (pr(TT, k), pr(TT, k), vr(vGC, 2), vr(vGC, 2))))
                    for k in range(4): blk.append(I('v_pk_mul_f32 %s, %s, %s' % (pr(TT, k), pr(v, k), pr(TT, k))))
                    for k in range(8): blk.append(I('v_exp_f32 v%d, v%d' % (TT + k, TT + k)))
                    for k in range(4): blk.append(I('v_pk_fma_f32 %s, %s, %s, %s op_sel:[0,%d,%d] op_sel_hi:[1,%d,%d]' % (pr(TT, k), pr(TT, k), vr(vIG, 2), vr(vIG, 2), t, t, t, t)))
                    for k in range(8): blk.append(I('v_rcp_f32 v%d, v%d' % (TT + k, TT + k)))
                    for k in range(4): blk.append(I('v_pk_mul_f32 %s, %s, %s' % (pr(TT, k), pr(v, k), pr(TT, k))))
                    for k in range(4): blk.append(I('v_cvt_pk_bf16_f32 v%d, v%d, v%d' % (o + k, TT + 2 * k, TT + 2 * k + 1)))
                    x = I('ds_write_b128 v%d, %s offset:%d' % (aHW, vr(o, 4), ((b * 2 + u) * 2 + t) * 1024)); hw.append(x); blk.append(x)
                    gel.append(blk); cnt += 1
        himg = [I('ds_read_b64_tr_b16 %s, v%d offset:%d' % (ar(HFR + 4 * m + 2 * h, 2), aHI, m * 2048 + 512 * h)) for m in range(8) for h in range(2)]
        nopen = 0
        for i, blk in enumerate(gel):
            extra = []
            if i >= 1 and nopen < A0 and i % max(1, 7 // max(A0, 1)) == 0:
                b_, fl = stage_open(nopen, hw[:4] if nopen == 0 else ())
                extra = b_ + fl + [x for y in preads(nopen) for x in y] + (himg if nopen == 0 else [])
                nopen += 1
            step = max(1, len(blk) // (len(extra) + 1)); k = 0
            for n_, x in enumerate(blk):
                self.seq.append(x)
                if k < len(extra) and (n_ + 1) % step == 0: self.seq.append(extra[k]); k += 1
            self.seq += extra[k:]
        self.seq += self.stamp()
        if nopen == 0:
            b_, fl = stage_open(0, hw); self.seq += b_; first = [x for y in preads(0) for x in y]
            self.seq += himg[:4] + first[:2] + himg[4:8] + first[2:4] + himg[8:] + first[4:]; nopen = 1
        else:
            e('s_barrier', deps=hw)
        hfr = [I('ds_read_b128 %s, v%d offset:%d' % (ar(HFR + 32 + 4 * k, 4), aHR, k * 2048)) for k in range(16)]
        for k in range(3):
            for q in range(2): e('v_mov_b32 v%d, s%d' % (PK[q] + 4 * k + 3, sNONCE))
        e('v_mov_b32 v%d, 0\nv_mov_b32 v%d, 0' % (PK[0] + 10, PK[1] + 10))
        e('s_mul_i32 s%d, s%d, 12288\ns_mul_i32 s%d, s%d, 3072\ns_add_u32 s%d, s%d, s%d\ns_mov_b32 s%d, s%d' % (sPUB, sS, sT1, sW, sPUB, sPUB, sT1, sT2, sS))
        self.seq += self.stamp()

        mf = []; pre = {}; post = {}
        for g_ in range(7):
            for k in range(24):
                i = 24 * g_ + k; acc = P2[g_ & 1]
                mf.append(I('v_mfma_f32_32x32x16_bf16 %s, %s, %s, %s' % (vr(acc, 16), ar(FIFO + (i % NFIFO) * 4, 4), ar(HFR + 4 * k, 4), '0' if k == 0 else vr(acc, 16))))
                post[i] = []
        for k in range(8): post[k] += hfr[2 * k:2 * k + 2]
        last = 8 * 20 - 4
        rem = list(range(nopen, 21))
        for idx, n in enumerate(rem):
            pos = max(0, min(8 * n - 4, int(round(idx * last / max(1, len(rem) - 1))))) if A0 else max(0, 8 * n - 4)
            pos = max(pos, 8 * n + 8 - NFIFO)
            b_, fl = stage_open(n); rds = preads(n)
            post[pos] += b_
            nh = len(fl) - 4
            for u in range(8):
                gp = max(min(pos + u, 8 * n + u - 2), pos, 8 * n + u - NFIFO)
                post[gp] = post[gp] + rds[u]
            if fl:
                post[pos + 1] += fl[:nh + 1]
                for q in range(1, 4): post[pos + 1 + 2 * q] += [fl[nh + q]]
        V = []
        seq = [I('buffer_load_dwordx4 %s, v%d, %s, 0 offen offset:%d' % (vr(RAW + 4 * k, 4), vXE, sr(SX, 4), 16 * k)) for k in range(2)]
        seq += [I('global_load_dwordx4 %s, v%d, s[20:21] offset:%d' % (vr(RAW + 8 + 4 * k, 4), vDE, 16 * k)) for k in range(2)]
        seq += [I('global_load_dwordx4 %s, v%d, s[30:31] offset:%d' % (vr(RAW + 16 + 4 * k, 4), vDE, 16 * k)) for k in range(2)]
        V += [(10, x) for x in seq]
        def publish(n):
            acc = P2[n & 1]; pk = PK[n & 1]; o = []
            o += [I('s_add_u32 s%d, s%d, 1' % (sT2, sT2)), [I('s_cmp_eq_u32 s%d, 7' % sT2), I('s_cselect_b32 s%d, 0, s%d' % (sT2, sT2))],
                  I('s_mul_i32 s%d, s%d, 86016' % (sT3, sT2)), I('s_add_u32 s%d, s%d, s%d' % (sT3, sT3, sPUB))]
            for k in range(8):
                o.append(I('v_cvt_pk_bf16_f32 v%d, v%d, v%d' % (pk + k + k // 3, acc + 2 * k, acc + 2 * k + 1)))
                if k in (2, 5, 7):
                    q = k // 3
                    o.append(I('buffer_store_dwordx4 %s, v%d, %s, s%d offen offset:%d %s' % (vr(pk + 4 * q, 4), vL16, sr(SIN, 4), sT3, q * 1024, p['stflag'])))
            return o
        base = []
        for k in range(8):
            x, d, b = RAW + k, RAW + 8 + k, RAW + 16 + k; s0 = SUM + 2 * k
            base += [I('v_lshlrev_b32 v%d, 16, v%d' % (T, x)), I('v_and_b32 v%d, 0xffff0000, v%d' % (T + 1, x)),
                     I('v_lshlrev_b32 v%d, 16, v%d' % (T + 2, d)), I('v_and_b32 v%d, 0xffff0000, v%d' % (T + 3, d)),
                     I('v_mul_f32 v%d, v%d, v%d' % (T, T, T + 2)), I('v_mul_f32 v%d, v%d, v%d' % (T + 1, T + 1, T + 3)),
                     I('v_lshlrev_b32 v%d, 16, v%d' % (s0, b)), I('v_cvt_pk_bf16_f32 v%d, v%d, v%d' % (T, T, T + 1)),
                     I('v_and_b32 v%d, 0xffff0000, v%d' % (s0 + 1, b)), I('v_mul_f32 v%d, v%d, v%d' % (s0, vGM, s0)),
                     I('v_and_b32 v%d, 0xffff0000, v%d' % (T + 1, T)), I('v_lshlrev_b32 v%d, 16, v%d' % (T, T)),
                     I('v_mul_f32 v%d, v%d, v%d' % (s0 + 1, vGM, s0 + 1)),
                     I('v_fmac_f32 v%d, v%d, v%d' % (s0, vG, T)), I('v_fmac_f32 v%d, v%d, v%d' % (s0 + 1, vG, T + 1))]
        sSRC = [4, 5, 6, 7, 8, 9] if not p['diag'] else [32, 33, 38, 39, 96, 97]
        def ploads(n):
            return [I('buffer_load_dwordx4 %s, v%d, %s, s%d offen offset:%d %s' % (vr(PIN + 12 * n + 4 * q, 4), vL16, sr(SIN, 4), sSRC[n], q * 1024, p['ldflag'])) for q in range(3)]
        def pcheck(n):
            r = PIN + 12 * n
            return [I('v_add3_u32 v%d, v%d, v%d, v%d' % (T + 4, r + 3, r + 7, r + 11)), I('v_cmp_ne_u32 vcc, s%d, v%d' % (sN3, T + 4))]
        def pacc(n):
            r = PIN + 12 * n
            o = pcheck(n) + [I('s_cbranch_vccnz L_rp%d' % n), I('L_rp%d_back:' % n)]
            self.tail += [I('L_rp%d:' % n), I('s_sub_u32 s%d, s%d, 1' % (sSPIN, sSPIN)), I('s_cbranch_scc1 L_rp%d_back' % n)] + ploads(n) + pcheck(n) + \
                         [I('s_cbranch_vccnz L_rp%d' % n), I('s_branch L_rp%d_back' % n)]
            for k in range(8):
                o.append(I('v_dot2c_f32_bf16 v%d, s%d, v%d' % (SUM + 2 * k, sLO, r + k + k // 3)))
            for k in range(8):
                o.append(I('v_dot2c_f32_bf16 v%d, s%d, v%d' % (SUM + 2 * k + 1, sHI, r + k + k // 3)))
            return o
        srcs = [I('s_mul_i32 s%d, s%d, 86016' % (sT1, sS)), I('s_mul_i32 s%d, s%d, 3072' % (sXO, sW)), I('s_add_u32 s%d, s%d, s%d' % (sT1, sT1, sXO)),
                I('s_mov_b32 s%d, s%d' % (sBO, sS))]
        for n in range(6):
            srcs += [I('s_sub_u32 s%d, s%d, 1' % (sBO, sBO)), I('s_cselect_b32 s%d, 6, s%d' % (sBO, sBO)),
                     I('s_mul_i32 s%d, s%d, 12288' % (sXO, sBO)), I('s_add_u32 s%d, s%d, s%d' % (sSRC[n], sXO, sT1))]
        self.seq += srcs
        endq = []
        for n in range(7):
            g0 = 24 * n
            if n >= 1: V += [(g0 + 2, x) for x in publish(n - 1)]
            if n == 1: V += [(g0 + 8, x) for x in base[:60]]
            if n == 2: V += [(g0 + 8, x) for x in base[60:]]
            for k in range(6):
                if p['poll'][k] == n: V += [(g0 + 8, x) for x in ploads(k)]
            for k in range(6):
                if p['poll'][k] + 1 == n: V += [(g0 + 8, x) for x in pacc(k)]
        left = self.weave(mf, pre, post, V, budget=5)
        self.seq += [x for _, x in left]
        self.seq += self.stamp()
        for k in range(6):
            if p['poll'][k] >= 7: self.seq += ploads(k)
        for k in range(6):
            if p['poll'][k] >= 6: self.seq += pacc(k)
        self.seq += self.stamp()
        for q in range(4):
            for k in range(2):
                e('v_pk_add_f32 %s, %s, %s' % (vr(SUM + 4 * q + 2 * k, 2), vr(SUM + 4 * q + 2 * k, 2), vr(P2[0] + 4 * q + 2 * k, 2)))
            e('buffer_store_dwordx4 %s, v%d, %s, 0 offen offset:%d %s' % (vr(SUM + 4 * q, 4), vOUT, sr(SOUT, 4), 16 * q, p['outflag']))
        e('s_sub_u32 s%d, s%d, 31\ns_or_b32 s%d, s%d, s%d\ns_or_b32 s%d, s%d, s%d\ns_cbranch_scc1 L_fin' % (sT0, sR, sT0, sT0, sS, sT0, sT0, sW))
        e('v_mov_b32 v%d, s%d\nv_mov_b32 v%d, 0\ns_mov_b64 exec, 1' % (T, sNONCE, T + 1))
        e('global_store_dword v%d, v%d, s[36:37] sc1' % (T + 1, T))
        e('s_mov_b64 exec, -1')
        e('L_fin:')
        if p['diag']:
            e('s_waitcnt vmcnt(0)')
            self.seq += self.stamp()
            e('s_memrealtime s[0:1]\ns_waitcnt lgkmcnt(0)')
            lst = [98, 100] + self.STAMPS[:self.nstamp] + [0]
            e('s_lshl_b32 s%d, s2, 2\ns_add_u32 s%d, s%d, s%d\ns_lshl_b32 s%d, s%d, 6\ns_add_u32 s%d, s%d, %d' % (sT0, sT0, sT0, sW, sT0, sT0, sT0, sT0, WS_DIAG))
            for k, r in enumerate(lst): e('v_mov_b32 v%d, s%d' % (64 + k, r))
            e('v_mov_b32 v%d, s%d\nv_mov_b32 v%d, s%d\ns_mov_b64 exec, 1' % (79, sSPIN, T, sT0))
            for q in range(4): e('global_store_dwordx4 v%d, %s, s[36:37] offset:%d' % (T, vr(64 + 4 * q, 4), 16 * q))
        e('L_exit:\ns_endpgm')

    def helper(self):
        g = Gen(); e = g.e
        e('L_helper:')
        e('s_and_b32 s%d, s%d, 3\ns_lshl_b32 s%d, s%d, 2\ns_add_u32 s%d, s%d, s%d' % (sT0, sT0, sT0, sT0, sT0, sT0, sW))
        e('s_mul_i32 s%d, s%d, 3' % (sT1, sT1))
        e('s_getpc_b64 s[38:39]\nL_pc:')
        e('s_sub_u32 s38, s38, L_pc-%s\ns_subb_u32 s39, s39, 0' % KNAME)
        e('v_lshl_add_u32 v2, s%d, 6, v%d\nv_lshlrev_b32 v3, 7, v2\nv_min_u32 v3, L_end-%s-4, v3' % (sT0, vL, KNAME))
        e('s_cmp_ge_u32 s%d, 4\ns_cbranch_scc1 L_h1' % sT0)
        e('global_load_dword v10, v3, s[38:39]')
        e('L_h1:\ns_waitcnt lgkmcnt(0)')
        e('v_lshrrev_b32 v4, 4, v2\nv_and_b32 v5, 15, v2\nv_mul_u32_u24 v4, 3584, v4\nv_lshl_add_u32 v4, v5, 7, v4')
        e('s_lshl_b32 s%d, s%d, 9\nv_add_u32 v4, s%d, v4' % (sT2, sT1, sT2))
        for k in range(7):
            e('global_load_dword v%d, v4, s[24:25]' % (11 + k))
            if k < 6: e('v_add_u32 v4, %d, v4' % (64 * 3584))
        e('v_lshrrev_b32 v6, 2, v2\nv_and_b32 v5, 3, v2\nv_lshlrev_b32 v5, 7, v5\ns_lshl_b32 s%d, s%d, 7\nv_add_u32 v5, s%d, v5' % (sT2, sT1, sT2))
        e('v_add_u32 v7, 256, v6\nv_min_u32 v7, 447, v7\nv_mul_u32_u24 v6, 896, v6\nv_mul_u32_u24 v7, 896, v7\nv_add_u32 v6, v6, v5\nv_add_u32 v7, v7, v5')
        e('s_mul_i32 s%d, s%d, %d\nv_lshlrev_b32 v8, 7, v2\nv_add_u32 v8, s%d, v8' % (sT2, sT1, 256 * 896, sT2))
        e('s_waitcnt vmcnt(0)')
        e('global_load_dword v10, v6, s[14:15]\nglobal_load_dword v11, v6, s[16:17]\nglobal_load_dword v12, v7, s[14:15]\nglobal_load_dword v13, v7, s[16:17]')
        for k in range(7):
            e('global_load_dword v%d, v8, s[28:29]' % (14 + k))
            if k < 6: e('v_add_u32 v8, %d, v8' % (1024 * 128))
        e('s_waitcnt vmcnt(0)\ns_endpgm')
        return g.seq

    def text(self):
        self.build()
        main = finish(self.seq)
        out = []; zb = None
        for k, x in enumerate(main):
            if x.tag == 'zbeg': zb = k
            if x.tag == 'zend': ze = k
        zalt = []
        for w in range(1, 4):
            zalt.append('L_z%d:' % w)
            zalt += [(x.alt[w] if x.alt else x.text) for x in main[zb + 1:ze]]
            zalt.append('s_branch L_zend')
        tail = []
        blk = []
        for x in self.tail:
            if x.kind == 'label' and blk: tail += finish([I('s_waitcnt vmcnt(0)')][:0] + blk); blk = []
            blk.append(x)
        tail += finish(blk)
        body = [x.text for x in main] + zalt + [x.text for x in tail]
        if self.p['helper']: body += [x.text for x in finish(self.helper())]
        body.append('L_end:')
        hdr = open('gated_mix__ssm_conv_s5__dense_activation_gelu__prompt.s.ref').read().split('; Override launch')[0]
        o = hdr + '; @launch grid=(256,1,1) block=(256,1,1) lds=%d\n' % LDS_BYTES
        o += '.amdgcn_target "amdgcn-amd-amdhsa--gfx950"\n.text\n.globl %s\n.p2align 8\n.type %s,@function\n%s:\n' % (KNAME, KNAME, KNAME)
        o += '\n'.join(('' if t.endswith(':') else '    ') + t for t in body) + '\n'
        o += '.section .rodata,"a"\n.p2align 6\n.amdhsa_kernel %s\n  .amdhsa_next_free_vgpr 512\n  .amdhsa_next_free_sgpr 102\n  .amdhsa_accum_offset 256\n' % KNAME
        o += '  .amdhsa_group_segment_fixed_size 0\n  .amdhsa_kernarg_size 144\n  .amdhsa_user_sgpr_count 2\n  .amdhsa_user_sgpr_kernarg_segment_ptr 1\n  .amdhsa_system_sgpr_workgroup_id_x 1\n.end_amdhsa_kernel\n'
        return o

if __name__ == '__main__':
    kw = json.loads(sys.argv[2]) if len(sys.argv) > 2 else {}
    open(sys.argv[1], 'w').write(Gen(**kw).text())
```

```python
import re

def regs(tok):
    tok = tok.strip()
    tok = tok.lstrip('-')
    if tok.startswith('|') and tok.endswith('|'): tok = tok[1:-1]
    m = re.fullmatch(r'([vas])\[(\d+):(\d+)\]', tok)
    if m: return {(m.group(1), i) for i in range(int(m.group(2)), int(m.group(3)) + 1)}
    m = re.fullmatch(r'([vas])(\d+)', tok)
    if m: return {(m.group(1), int(m.group(2)))}
    if tok in ('vcc', 'exec', 'm0'): return {(tok, 0)}
    return set()

TRANS = ('v_exp_f32', 'v_log_f32', 'v_rcp_f32', 'v_rsq_f32', 'v_sqrt_f32', 'v_sin_f32', 'v_cos_f32')

class I:
    __slots__ = ('text', 'op', 'kind', 'reads', 'writes', 'deps', 'srcc', 'ab', 'dpp', 'data', 'tag', 'alt')
    def __init__(self, text, deps=(), tag=None):
        self.text = text; self.deps = list(deps); self.tag = tag; self.alt = None
        self.srcc = set(); self.ab = set(); self.dpp = set(); self.data = set()
        t = text.split(';')[0].strip()
        if t.endswith(':'):
            self.op = 'label'; self.kind = 'label'; self.reads = set(); self.writes = set(); return
        parts = t.split(None, 1)
        op = self.op = parts[0]
        rest = parts[1] if len(parts) > 1 else ''
        ops = [o.strip() for o in re.split(r',(?![^\[]*\])', rest)] if rest else []
        toks = []
        for o in ops:
            toks.append(o.split()[0] if o.split() else o)
        mods = rest
        R = lambda lst: set().union(*[regs(x) for x in lst]) if lst else set()
        self.reads = set(); self.writes = set()
        if op.startswith('v_mfma'):
            self.kind = 'mfma'; self.writes = regs(toks[0]); self.ab = R(toks[1:3]); self.srcc = regs(toks[3])
            self.reads = self.ab | self.srcc
        elif op.startswith('v_cmp'):
            self.kind = 'valu'; self.writes = regs(toks[0]); self.reads = R(toks[1:])
        elif op.startswith('v_permlane32_swap') or op.startswith('v_permlane16_swap') or op.startswith('v_swap'):
            self.kind = 'valu'; self.writes = R(toks[:2]); self.reads = R(toks[:2]); self.dpp = R(toks[:2])
        elif op.startswith('v_'):
            base = op.replace('_e32', '').replace('_e64', '').replace('_dpp', '')
            self.kind = 'trans' if base in TRANS else 'valu'
            self.writes = regs(toks[0]); self.reads = R(toks[1:])
            if base.startswith(('v_fmac', 'v_dot2c', 'v_pk_fmac')): self.reads |= self.writes
            if base.startswith(('v_add_co', 'v_sub_co', 'v_addc_co', 'v_subb_co')):
                self.writes |= regs(toks[1])
            if base == 'v_cndmask_b32' and len(toks) == 3: self.reads |= {('vcc', 0)}
            if op.endswith('_dpp'):
                self.dpp = regs(toks[1])
        elif op.startswith('ds_read') or op.startswith('ds_bpermute') or op.startswith('ds_swizzle'):
            self.kind = 'ds_read'; self.writes = regs(toks[0]); self.reads = R(toks[1:])
        elif op.startswith('ds_write'):
            self.kind = 'ds_write'; self.reads = R(toks)
        elif op.startswith('buffer_load') or op.startswith('global_load'):
            if re.search(r'\blds\b', mods) or '_lds_' in op:
                self.kind = 'dma'; self.reads = R(toks) | {('m0', 0)}
            else:
                self.kind = 'vload'; self.writes = regs(toks[0]); self.reads = R(toks[1:])
        elif op.startswith('buffer_store'):
            self.kind = 'vstore'; self.reads = R(toks); self.data = regs(toks[0])
        elif op.startswith('global_store'):
            self.kind = 'vstore'; self.reads = R(toks); self.data = regs(toks[1])
        elif op.startswith(('s_load', 's_memtime', 's_memrealtime')):
            self.kind = 'smem'; self.writes = regs(toks[0]); self.reads = R(toks[1:])
        elif op == 's_barrier': self.kind = 'barrier'
        elif op == 's_waitcnt': self.kind = 'wait'
        elif op == 's_nop': self.kind = 'nop'
        elif op.startswith(('s_cbranch', 's_branch', 's_endpgm', 's_sleep', 's_setprio')):
            self.kind = 'branch'
            if 'vcc' in op: self.reads = {('vcc', 0)}
        elif op.startswith('s_cmp') or op.startswith('s_bitcmp'):
            self.kind = 'salu'; self.reads = R(toks)
        elif op.startswith('s_'):
            self.kind = 'salu'; self.writes = regs(toks[0]); self.reads = R(toks[1:])
            if op in ('s_addk_i32', 's_mulk_i32'): self.reads |= self.writes
            if 'saveexec' in op: self.writes |= {('exec', 0)}; self.reads |= {('exec', 0)}
        else:
            raise ValueError('unknown instruction ' + text)

VM = ('dma', 'vload', 'vstore')
LG = ('ds_read', 'ds_write', 'smem')

def add_waits(seq, check_left=None):
    out = []; vm = []; lg = []; seen = set()
    for ins in seq:
        for d in ins.deps: assert id(d) in seen, 'dependence on a later instruction: %s <- %s' % (ins.text, d.text)
        seen.add(id(ins))
        if ins.kind == 'wait':
            m = re.search(r'vmcnt\((\d+)\)', ins.text)
            if m:
                n = int(m.group(1)); vm = vm[len(vm) - n:] if n < len(vm) else vm
                if n == 0: vm = []
            m = re.search(r'lgkmcnt\((\d+)\)', ins.text)
            if m:
                n = int(m.group(1))
                if n == 0: lg = []
                elif not any(x.kind == 'smem' for x in lg): lg = lg[len(lg) - n:] if n < len(lg) else lg
            out.append(ins); continue
        touch = ins.reads | ins.writes
        nv = None; nl = None
        for k, p in enumerate(vm):
            if (p.writes & touch) or any(p is d for d in ins.deps): nv = len(vm) - 1 - k
        for k, p in enumerate(lg):
            if (p.writes & touch) or any(p is d for d in ins.deps): nl = len(lg) - 1 - k
        if nl is not None and any(x.kind == 'smem' for x in lg): nl = 0
        if nv is not None or nl is not None:
            t = 's_waitcnt'
            if nv is not None:
                nv = min(nv, 63); t += ' vmcnt(%d)' % nv; vm = vm[len(vm) - nv:] if nv else []
            if nl is not None:
                nl = min(nl, 15); t += ' lgkmcnt(%d)' % nl; lg = lg[len(lg) - nl:] if nl else []
            out.append(I(t))
        out.append(ins)
        if ins.kind in VM:
            vm.append(ins)
            assert len(vm) <= 63, 'too many vm ops outstanding'
        if ins.kind in LG: lg.append(ins)
    return out

def isv(r): return r[0] in ('v', 'a')

def need_states(p, c):
    n = 0
    pv = p.kind in ('valu', 'trans')
    cv = c.kind in ('valu', 'trans')
    if pv:
        w = p.writes
        wv = {r for r in w if isv(r)}; ws = w - wv
        if c.kind == 'mfma' and (wv & c.reads): n = max(n, 2)
        if cv and (wv & c.dpp): n = max(n, 2)
        if c.op.startswith(('v_readfirstlane', 'v_readlane')) and (wv & c.reads): n = max(n, 1)
        if p.kind == 'trans' and cv and (wv & c.reads): n = max(n, 1)
        if cv and (ws & c.reads): n = max(n, 2)
        if c.kind in VM and (ws & c.reads): n = max(n, 5)
        if p.op.startswith('v_dot2') and c.op != p.op and (wv & (c.reads | c.writes)): n = max(n, 3)
    if p.kind == 'mfma':
        if c.kind == 'mfma':
            if p.writes & c.ab: n = max(n, 12)
            if (p.writes & c.srcc) and p.writes != c.srcc: n = max(n, 10)
            if (p.writes & c.writes) and c.srcc != p.writes: n = max(n, 10)
        elif c.kind in ('valu', 'trans', 'ds_read', 'ds_write', 'vload', 'vstore', 'dma'):
            if p.writes & (c.reads | c.writes): n = max(n, 12)
            if cv and (p.srcc & c.writes): n = max(n, 7)
            if c.kind in ('ds_read', 'vload') and (p.srcc & c.writes): n = max(n, 7)
    if p.kind == 'salu' and ('m0', 0) in p.writes and c.kind == 'dma': n = max(n, 1)
    if p.kind == 'vstore' and len(p.data) >= 3 and (p.data & c.writes): n = max(n, 2)
    if p.kind == 'ds_write' and cv and (p.reads & c.writes): n = max(n, 1)
    return n

def add_nops(seq):
    out = []
    for ins in seq:
        if ins.kind == 'label':
            out.append(ins); continue
        need = 0; dist = 0
        for p in reversed(out):
            if p.kind == 'label': continue
            k = need_states(p, ins)
            if k > dist: need = max(need, k - dist)
            dist += (int(p.text.split()[1]) + 1) if p.kind == 'nop' else 1
            if dist >= 13: break
        while need > 0:
            k = min(need, 16); out.append(I('s_nop %d' % (k - 1))); need -= k
        out.append(ins)
    return out

def finish(seq):
    return add_nops(add_waits(seq))
```

```python
import sys, json, math, struct
from asmgen import I, finish

KNAME = 'gated_mix__ssm_conv_s5__dense_activation_gelu__prompt_kernel'
RING = 24576; XH = 98304; HF = XH; HIMG = XH + 32768; MISC = XH + 57344
ZBUF = MISC; G2BUF = MISC + 1024; LDS_BYTES = MISC + 2048
WS_ST = 4096; WS_IN = 1 << 20; WS_DIAG = 24 << 20
def f2u(x): return struct.unpack('<I', struct.pack('<f', x))[0]

DEF = dict(diag=0, gather_k=13, check_k=21, bz_k=2, ahead0=0, spin=1 << 18, helper=1, poll=(5, 5, 5, 6, 6, 7),
           stflag='sc1', ldflag='sc1', outflag='', wsoff=0)

def vr(a, n=1): return 'v%d' % a if n == 1 else 'v[%d:%d]' % (a, a + n - 1)
def ar(a, n=1): return 'a%d' % a if n == 1 else 'a[%d:%d]' % (a, a + n - 1)
def sr(a, n=1): return 's%d' % a if n == 1 else 's[%d:%d]' % (a, a + n - 1)
DPP = 'row_ror:8 row_mask:0xf bank_mask:0xf'

SX, SBR, SBI, SW1, SW2, SC, SST, SIN, SOUT = 40, 44, 48, 52, 56, 60, 64, 68, 72
sW, sS, sR, sRING, sXO, sBO, sW1O, sT0, sT1, sG, sW2B, sCB, sPUB, sT2 = range(76, 90)
sNONCE, sN3, sLO, sHI, sSPIN, sT3 = 90, 91, 92, 93, 94, 95
vL = 1
vE, vOx, vO, vB2, vB3, vC2, vC3 = 2, 3, 4, 5, 6, 7, 8
vW1, vW2 = 9, 13
aX, aB, aW1, aW2, aC = 17, 21, 25, 27, 29
aHI, aHW, aHR, aHS, vL16, vG0, vG1, vPB, aZW, aZR, aGW, aGR, vOUT, vXE, vDE = range(37, 52)
vGC, vIG, vG, vGM, vEXP = 52, 54, 56, 57, 58
T = 59
U = 64
def ACC(b, t): return 96 + (2 * b + t) * 16
FR = 160
GA = 192
cA, cSB, c16, c32, c64, c128, cCO, cMU = 224, 225, 226, 228, 230, 232, 234, 236
vZ0, vZ1, vT0 = 238, 239, 240
T2 = 241
def XA(kk, t): return (kk * 2 + t) * 4
ZA = 224
P2 = (64, 80); PK = (96, 108); PIN = 120; SUM = 192; RAW = 208
HFR = 0; FIFO = 96; NFIFO = 40

class Gen:
    def __init__(self, **kw):
        self.p = dict(DEF); self.p.update(kw)
        self.seq = []; self.tail = []; self.nstamp = 0

    def e(self, text, deps=(), tag=None):
        last = None
        for t in text.split('\n'):
            t = t.strip()
            if t:
                last = I(t, deps, tag); self.seq.append(last)
        return last

    STAMPS = [4, 6, 8, 10, 12, 14, 16, 18, 22, 24, 26, 28]
    def stamp(self):
        if not self.p['diag']: return []
        r = self.STAMPS[self.nstamp]; self.nstamp += 1
        return [I('s_memtime %s' % sr(r, 2))]

    def weave(self, mf, pre, post, valu=None, budget=5):
        valu = valu if valu is not None else []
        for i, m in enumerate(mf):
            for x in pre.get(i, []): self.seq.append(x)
            self.seq.append(m)
            used = len(pre.get(i + 1, []))
            for x in post.get(i, []): self.seq.append(x); used += 1
            while valu and used < budget and valu[0][0] <= i:
                x = valu.pop(0)[1]
                if isinstance(x, list): self.seq += x; used += len(x)
                else: self.seq.append(x); used += 2 if x.kind == 'trans' else 1
        out = []
        for g, x in valu: out += [(g, y) for y in x] if isinstance(x, list) else [(g, x)]
        return out

    def fill(self, F):
        slot = F % 6; out = []; d = []
        if F < 7:
            cb = F
            if F == 6:
                out.append(I('s_add_u32 s%d, s%d, 768' % (sBO, sBO))); cb = 0
            out.append(I('s_add_u32 m0, s%d, %d' % (sRING, slot * 4096 - cb * 128)))
            for q, (v, srd) in enumerate(((vE, SBR), (vO, SBI), (vB2, SBR), (vB3, SBI))):
                d.append(I('buffer_load_dwordx4 v%d, %s, s%d offen offset:%d lds' % (v, sr(srd, 4), sBO, cb * 128 + q * 1024)))
        elif F < 21:
            n = F - 7
            out.append(I('s_add_u32 m0, s%d, %d' % (sRING, slot * 4096)))
            if n: out.append(I('s_add_u32 s%d, s%d, %d' % (sW1O, sW1O, 32 * 3584)))
            for q in range(4):
                d.append(I('buffer_load_dwordx4 v%d, %s, s%d offen offset:%d lds' % (vW1 + q, sr(SW1, 4), sW1O, q * 1024)))
        else:
            n = F - 21; ty = n % 3
            out.append(I('s_add_u32 m0, s%d, %d' % (sRING, slot * 4096)))
            if ty == 0:
                out.append(I('s_add_u32 s%d, s%d, 1' % (sG, sG)))
                out.append(I('s_cmp_eq_u32 s%d, 7' % sG))
                out.append(I('s_cselect_b32 s%d, 0, s%d' % (sG, sG)))
                out.append(I('s_mul_i32 s%d, s%d, 57344' % (sT0, sG)))
                out.append(I('s_add_u32 s%d, s%d, s%d' % (sT0, sT0, sCB)))
                for q, v in enumerate((vE, vOx, vC2, vC3)):
                    d.append(I('buffer_load_dwordx4 v%d, %s, s%d offen offset:%d lds' % (v, sr(SC, 4), sT0, q * 1024)))
            else:
                if ty == 1:
                    out.append(I('s_lshl_b32 s%d, s%d, 7' % (sT0, sG)))
                    out.append(I('s_add_u32 s%d, s%d, s%d' % (sT0, sT0, sW2B)))
                else:
                    out.append(I('s_add_u32 s%d, s%d, %d' % (sT0, sT0, 128 * 896)))
                for q in range(4):
                    d.append(I('buffer_load_dwordx4 v%d, %s, s%d offen offset:%d lds' % (vW2 + q, sr(SW2, 4), sT0, q * 1024)))
        self.fills[F] = d
        return out + d

    def cmul(self, dst, x, c, neg=False):
        return [I('v_fmac_f32 v%d, v%d, v%d' % (dst, c, x)),
                I('v_fmac_f32_dpp v%d, v%d, %sv%d %s' % (dst, x, '-' if neg else '', c + 1, DPP))]

    def srd(self, d, base, nbytes):
        self.e('s_mov_b32 s%d, s%d\ns_mov_b32 s%d, s%d\ns_mov_b32 s%d, %d\ns_mov_b32 s%d, 0x20000' % (d, base, d + 1, base + 1, d + 2, nbytes, d + 3))

    def build(self):
        p = self.p; e = self.e; self.fills = {}
        if p['diag']:
            e('s_memtime s[98:99]\ns_memrealtime s[100:101]')
        e('s_load_dwordx16 s[4:19], s[0:1], 0\ns_load_dwordx16 s[20:35], s[0:1], 64\ns_load_dwordx2 s[36:37], s[0:1], 136')
        e('s_cmp_ge_u32 s2, 256\ns_cbranch_scc1 L_exit')
        e('v_lshrrev_b32 v%d, 6, v0\nv_and_b32 v%d, 63, v0' % (T, vL))
        e('s_lshr_b32 s%d, s2, 3\ns_and_b32 s%d, s2, 1' % (sT0, sT1))
        e('v_readfirstlane_b32 s%d, v%d' % (sW, T))
        e('s_cmp_ge_u32 s%d, 28\ns_cbranch_scc1 %s' % (sT0, 'L_helper' if p['helper'] else 'L_exit'))
        e('s_lshl_b32 s%d, s%d, 2' % (sT1, sT1))
        e('s_and_b32 s%d, s2, 6\ns_lshl_b32 s%d, s%d, 2' % (sR, sR, sR))
        e('s_and_b32 s%d, s%d, 7\ns_add_u32 s%d, s%d, s%d' % (sT2, sT0, sR, sR, sT2))
        e('s_lshr_b32 s%d, s%d, 3\ns_add_u32 s%d, s%d, s%d' % (sS, sT0, sS, sS, sT1))
        e('s_cmp_ge_u32 s%d, 24\ns_cselect_b32 s%d, 3, s%d\ns_cselect_b32 s%d, s%d, 0' % (sT0, sS, sS, sT1, sT1))
        e('s_add_u32 s%d, s%d, s%d' % (sR, sR, sT1))
        e('v_lshrrev_b32 v%d, 3, v%d' % (T, vL))
        e('v_lshrrev_b32 v%d, 4, v%d' % (T + 1, vL))
        e('v_and_b32 v%d, 7, v%d' % (T + 2, vL))
        e('v_mul_u32_u24 v%d, 896, v%d' % (T + 3, T))
        e('v_xor_b32 v%d, v%d, v%d' % (T + 4, T + 2, T + 1))
        e('v_lshl_add_u32 v%d, v%d, 4, v%d' % (vE, T + 4, T + 3))
        e('v_xor_b32 v%d, 64, v%d' % (vO, vE))
        e('v_add_u32 v%d, 6144, v%d\nv_add_u32 v%d, 5120, v%d\nv_add_u32 v%d, 5120, v%d' % (vOx, vO, vB2, vE, vB3, vO))
        e('s_mul_i32 s%d, s%d, %d' % (sRING, sW, RING))
        e('s_lshl_b32 s%d, s%d, 2\ns_add_u32 s%d, s%d, s%d\ns_mul_i32 s%d, s%d, %d' % (sXO, sR, sXO, sXO, sW, sXO, sXO, 16 * 896))
        e('s_lshl_b32 s%d, s%d, 2\ns_add_u32 s%d, s%d, s%d' % (sT2, sS, sT2, sT2, sW))
        e('s_mul_i32 s%d, s%d, %d' % (sBO, sT2, 16 * 896))
        e('s_lshl_b32 s%d, s%d, 11\ns_add_u32 s%d, s%d, %d' % (sT1, sW, sT1, sT1, XH))
        e('s_mov_b32 s%d, %d\ns_mov_b32 s%d, 0x20000' % (SX + 2, 2048 * 896, SX + 3))
        e('s_mov_b32 s%d, %d\ns_mov_b32 s%d, 0x20000' % (SBR + 2, 448 * 896, SBR + 3))
        e('s_mov_b32 s%d, %d\ns_mov_b32 s%d, 0x20000' % (SBI + 2, 448 * 896 + 1024, SBI + 3))
        e('s_mov_b64 %s, s[4:5]\ns_mov_b64 %s, s[10:11]' % (sr(SX, 2), sr(SBR, 2)))
        e('s_sub_u32 s%d, s12, 1024\ns_subb_u32 s%d, s13, 0' % (SBI, SBI + 1))
        xd = {}
        def xfill(cb):
            e('s_add_u32 m0, s%d, %d' % (sT1, cb * 8192 - cb * 128))
            a = e('buffer_load_dwordx4 v%d, %s, s%d offen offset:%d lds' % (vE, sr(SX, 4), sXO, cb * 128))
            b = e('buffer_load_dwordx4 v%d, %s, s%d offen offset:%d lds' % (vOx, sr(SX, 4), sXO, cb * 128 + 1024))
            xd[cb] = [a, b]
        j, hi = T2, T2 + 1
        for cb in range(7):
            xfill(cb)
            if cb < 6: self.seq += self.fill(cb)
            if cb == 0:
                e('v_and_b32 v%d, 31, v%d\nv_lshrrev_b32 v%d, 5, v%d' % (j, vL, hi, vL))
                e('v_lshrrev_b32 v%d, 4, v%d\nv_and_b32 v%d, 7, v%d' % (T + 3, j, T + 4, j))
                e('v_lshl_add_u32 v%d, v%d, 3, v%d' % (T + 3, T + 3, T + 4))
                e('s_lshl_b32 s%d, s%d, 4' % (sT0, sT2))
                e('v_add_lshl_u32 v%d, v%d, s%d, 1' % (T + 3, T + 3, sT0))
                e('v_mov_b32 v%d, 0' % (T + 4))
                e('global_load_ushort v%d, v%d, s[18:19]' % (GA + 16, T + 3))
                e('global_load_ushort v%d, v%d, s[6:7]' % (GA + 17, T + 3))
                e('global_load_ushort v%d, v%d, s[8:9]' % (GA + 18, T + 3))
                e('global_load_dword v%d, v%d, s[36:37] sc1' % (GA + 19, T + 4))
        e('s_mul_i32 s%d, s%d, 224' % (sT0, sW))
        e('v_lshl_add_u32 v%d, v%d, 4, s%d' % (T + 3, hi, sT0))
        GW = [ACC(0, 1) + 4 * n if n < 4 else ACC(1, 1) + 4 * (n - 4) for n in range(7)]
        for n in range(7): e('global_load_dwordx4 %s, v%d, s[32:33] offset:%d' % (vr(GW[n], 4), T + 3, n * 32))
        e('s_lshl_b32 s%d, s%d, 7' % (sT0, sT2))
        e('v_lshl_add_u32 v%d, v%d, 5, s%d' % (T + 4, hi, sT0))
        for n in range(4): e('global_load_dwordx4 %s, v%d, s[26:27] offset:%d' % (vr(GA + 4 * n, 4), T + 4, (n >> 1) * 64 + (n & 1) * 16))
        self.seq += self.stamp()
        self.srd(SW1, 24, 448 * 3584); self.srd(SW2, 28, 1792 * 896); self.srd(SOUT, 34, 2048 * 1792)
        e('s_cmp_ge_u32 s%d, 2\ns_cselect_b32 s%d, s16, s14\ns_cselect_b32 s%d, s17, s15' % (sW, SC, SC + 1))
        e('s_mov_b32 s%d, %d\ns_mov_b32 s%d, 0x20000' % (SC + 2, 448 * 896, SC + 3))
        e('s_lshl_b32 s%d, s%d, 13\ns_add_u32 s%d, s%d, %d' % (sT0, sT2, sT0, sT0, WS_ST + p['wsoff']))
        e('s_add_u32 s%d, s36, s%d\ns_addc_u32 s%d, s37, 0\ns_mov_b32 s%d, 8192\ns_mov_b32 s%d, 0x20000' % (SST, sT0, SST + 1, SST + 2, SST + 3))
        e('s_mul_i32 s%d, s%d, 602112\ns_add_u32 s%d, s%d, %d' % (sT0, sR, sT0, sT0, WS_IN + p['wsoff']))
        e('s_add_u32 s%d, s36, s%d\ns_addc_u32 s%d, s37, 0\ns_mov_b32 s%d, 602112\ns_mov_b32 s%d, 0x20000' % (SIN, sT0, SIN + 1, SIN + 2, SIN + 3))
        e('s_lshl_b32 s%d, s%d, 7' % (sW1O, sT2))
        e('s_lshl_b32 s%d, s%d, 3\ns_add_u32 s%d, s%d, s%d\ns_mul_i32 s%d, s%d, %d' % (sW2B, sS, sW2B, sW2B, sW, sW2B, sW2B, 32 * 896))
        e('s_and_b32 s%d, s%d, 1\ns_mul_i32 s%d, s%d, %d\ns_lshl_b32 s%d, s%d, 7\ns_add_u32 s%d, s%d, s%d' % (sT3, sW, sCB, sT3, 32 * 896, sT0, sS, sCB, sCB, sT0))
        e('s_mov_b32 s%d, s%d' % (sG, sS))
        e('s_mov_b32 s%d, 0x3f80\ns_mov_b32 s%d, 0x3f800000\ns_mov_b32 s%d, %d' % (sLO, sHI, sSPIN, p['spin']))
        tau, sw, rr, t0, t1, t2 = T2 + 2, T2 + 3, T2 + 4, T2 + 5, T2 + 6, T2 + 7
        e('v_add_u32 v%d, 12288, v%d\nv_add_u32 v%d, 18432, v%d' % (vC2, vE, vC3, vO))
        e('v_and_b32 v%d, 3, v%d\nv_and_b32 v%d, 2, v%d\nv_lshlrev_b32 v%d, 1, v%d' % (t0, T, t1, T, t1, t1))
        e('v_xor_b32 v%d, v%d, v%d\nv_xor_b32 v%d, v%d, v%d\nv_lshlrev_b32 v%d, 4, v%d' % (t0, t0, t1, t0, t0, T + 2, t0, t0))
        e('v_mul_u32_u24 v%d, 3584, v%d\nv_add_u32 v%d, v%d, v%d' % (t1, T, vW1, t1, t0))
        e('v_mul_u32_u24 v%d, 896, v%d\nv_add_u32 v%d, v%d, v%d' % (t1, T, vW2, t1, t0))
        for q in range(1, 4):
            e('v_add_u32 v%d, %d, v%d\nv_add_u32 v%d, %d, v%d' % (vW1 + q, q * (28672 - 1024), vW1, vW2 + q, q * 6144, vW2))
        e('v_bfe_u32 v%d, v%d, 2, 1\nv_lshrrev_b32 v%d, 3, v%d\nv_and_b32 v%d, 3, v%d' % (t0, j, t1, j, tau, j))
        e('v_lshl_add_u32 v%d, v%d, 4, v%d\nv_lshl_add_u32 v%d, v%d, 2, v%d' % (tau, t0, tau, tau, t1, tau))
        e('v_bfe_u32 v%d, v%d, 1, 3' % (sw, tau))
        e('v_xor_b32 v%d, v%d, v%d\nv_lshlrev_b32 v%d, 4, v%d\nv_lshl_add_u32 v%d, v%d, 7, v%d' % (t0, hi, sw, t0, t0, t0, tau, t0))
        e('v_add_u32 v%d, %d, v%d' % (aX, XH, t0))
        for k in range(1, 4): e('v_xor_b32 v%d, %d, v%d' % (aX + k, k << 5, aX))
        e('v_bfe_u32 v%d, v%d, 1, 3\nv_xor_b32 v%d, v%d, v%d\nv_lshlrev_b32 v%d, 4, v%d' % (t0, j, t0, hi, t0, t0, t0))
        e('v_lshl_add_u32 v%d, v%d, 7, v%d\nv_add_u32 v%d, s%d, v%d' % (t0, j, t0, aB, sRING, t0))
        for k in range(1, 4): e('v_xor_b32 v%d, %d, v%d' % (aB + k, k << 5, aB))
        e('v_lshlrev_b32 v%d, 4, v%d\nv_lshl_add_u32 v%d, v%d, 7, v%d' % (t0, sw, t0, tau, t0))
        e('v_mul_u32_u24 v%d, %d, v%d\ns_mul_i32 s%d, s%d, %d' % (t1, 2 * RING, hi, sT0, sT3, RING))
        e('v_add3_u32 v%d, v%d, v%d, s%d' % (aC, t0, t1, sT0))
        for m in range(1, 8): e('v_xor_b32 v%d, %d, v%d' % (aC + m, m << 4, aC))
        e('v_bfe_u32 v%d, v%d, 2, 2' % (rr, vL))
        e('v_and_b32 v%d, 2, v%d\nv_lshlrev_b32 v%d, 1, v%d\nv_xor_b32 v%d, v%d, v%d' % (t0, rr, t0, t0, t0, t0, rr))
        e('v_and_b32 v%d, 1, v%d\nv_bfe_u32 v%d, v%d, 4, 1\nv_lshl_add_u32 v%d, v%d, 1, v%d' % (t1, vL, t2, vL, t1, t1, t2))
        e('v_xor_b32 v%d, v%d, v%d\nv_lshlrev_b32 v%d, 4, v%d\nv_lshl_add_u32 v%d, v%d, 7, v%d' % (t0, t0, t1, t0, t0, t0, rr, t0))
        e('v_bfe_u32 v%d, v%d, 1, 1\nv_lshl_add_u32 v%d, v%d, 3, v%d' % (t1, vL, t0, t1, t0))
        e('v_lshl_add_u32 v%d, v%d, 10, v%d' % (t1, hi, t0))
        e('v_add_u32 v%d, s%d, v%d\nv_xor_b32 v%d, 64, v%d' % (aW1, sRING, t1, aW1 + 1, aW1))
        e('s_lshr_b32 s%d, s%d, 1\ns_lshl_b32 s%d, s%d, 6' % (sT1, sW, sT0, sT1))
        e('v_xor_b32 v%d, s%d, v%d\nv_add_u32 v%d, %d, v%d' % (t1, sT0, t1, aHI, HIMG, t1))
        e('s_lshl_b32 s%d, s%d, 6' % (sT0, sT3))
        e('v_lshl_add_u32 v%d, v%d, 11, v%d\nv_xor_b32 v%d, s%d, v%d\nv_add_u32 v%d, %d, v%d' % (t1, hi, t0, aW2, sT0, t1, aW2 + 1, 2 * RING, aW2))
        e('v_lshlrev_b32 v%d, 4, v%d' % (vL16, vL))
        e('s_lshl_b32 s%d, s%d, 13\ns_add_u32 s%d, s%d, %d\nv_add_u32 v%d, s%d, v%d' % (sT0, sW, sT0, sT0, HF, aHW, sT0, vL16))
        e('s_lshl_b32 s%d, s%d, 10\ns_add_u32 s%d, s%d, %d\nv_add_u32 v%d, s%d, v%d' % (sT0, sT1, sT0, sT0, HF, aHR, sT0, vL16))
        e('v_and_b32 v%d, 3, v%d\nv_and_b32 v%d, 2, v%d\nv_lshlrev_b32 v%d, 1, v%d\nv_xor_b32 v%d, v%d, v%d' % (t0, j, t1, j, t1, t1, t0, t0, t1))
        e('v_lshlrev_b32 v%d, 1, v%d\nv_xor_b32 v%d, v%d, v%d\nv_lshlrev_b32 v%d, 4, v%d\nv_lshl_add_u32 v%d, v%d, 7, v%d' % (t1, hi, t0, t0, t1, t0, t0, t0, j, t0))
        e('s_lshl_b32 s%d, s%d, 12\ns_add_u32 s%d, s%d, %d\nv_add_u32 v%d, s%d, v%d' % (sT0, sW, sT0, sT0, HIMG, aHS, sT0, t0))
        e('s_sub_u32 s%d, 32, s%d\nv_add_u32 v%d, s%d, v%d\nv_lshlrev_b32 v%d, 3, v%d' % (sT0, sR, t0, sT0, hi, t1, j))
        e('v_lshl_add_u32 v%d, v%d, 8, v%d\nv_add_u32 v%d, 4096, v%d' % (vG0, t0, t1, vG1, vG0))
        e('s_sub_u32 s%d, 31, s%d\ns_lshl_b32 s%d, s%d, 8\nv_add_u32 v%d, s%d, v%d\nv_lshl_add_u32 v%d, v%d, 16, v%d' % (sT0, sR, sT0, sT0, t1, sT0, t1, vPB, hi, t1))
        e('v_lshl_add_u32 v%d, v%d, 5, v%d' % (t0, hi, tau))
        e('s_lshl_b32 s%d, s%d, 2\ns_add_u32 s%d, s%d, %d\nv_lshl_add_u32 v%d, v%d, 4, s%d' % (sT0, sW, sT0, sT0, ZBUF, aZW, t0, sT0))
        e('v_lshlrev_b32 v%d, 4, v%d\nv_add_u32 v%d, %d, v%d' % (t1, tau, aZR, ZBUF, t1))
        e('s_lshl_b32 s%d, s%d, 8\ns_add_u32 s%d, s%d, %d\nv_lshl_add_u32 v%d, v%d, 2, s%d\nv_lshl_add_u32 v%d, v%d, 6, s%d' % (sT0, sW, sT0, sT0, G2BUF, aGW, t0, sT0, aGR, hi, sT0))
        e('s_lshl_b32 s%d, s%d, 1\ns_add_u32 s%d, s%d, s%d\ns_lshl_b32 s%d, s%d, 5\nv_add_u32 v%d, s%d, v%d' % (sT0, sR, sT0, sT0, sT1, sT0, sT0, t0, sT0, tau))
        e('s_lshl_b32 s%d, s%d, 1\ns_add_u32 s%d, s%d, s%d\ns_lshl_b32 s%d, s%d, 6\nv_lshl_add_u32 v%d, v%d, 5, s%d' % (sT0, sS, sT0, sT0, sT3, sT0, sT0, vDE, hi, sT0))
        e('v_mul_u32_u24 v%d, 896, v%d\nv_add_u32 v%d, v%d, v%d\nv_lshlrev_b32 v%d, 1, v%d' % (t0, t0, vXE, t0, vDE, vOUT, vXE))
        c0 = -2.0 * math.sqrt(2.0 / math.pi) * math.log2(math.e)
        e('v_mov_b32 v%d, 0x%08x\nv_mov_b32 v%d, 0x%08x' % (vGC, f2u(c0 * 0.044715), vGC + 1, f2u(c0)))
        self.seq += self.stamp()
        keep = self.seq; self.seq = []
        LD, LR, LI = GA + 16, GA + 17, GA + 18
        e('v_lshlrev_b32 v%d, 16, v%d\nv_lshlrev_b32 v%d, 16, v%d\nv_lshlrev_b32 v%d, 16, v%d' % (LD, LD, LR, LR, LI, LI))
        e('v_readfirstlane_b32 s%d, v%d' % (sNONCE, GA + 19))
        e('v_mul_f32 v%d, 0x%08x, v%d\nv_exp_f32 v%d, v%d' % (LD, f2u(math.log2(math.e)), LD, LD, LD))
        e('s_add_u32 s%d, s%d, 1\ns_mul_i32 s%d, s%d, 3' % (sNONCE, sNONCE, sN3, sNONCE))
        e('v_cvt_pk_bf16_f32 v%d, v%d, v%d\nv_and_b32 v%d, 0xffff0000, v%d' % (LD, LD, LD, LD, LD))
        e('v_mul_f32 v%d, v%d, v%d\nv_mul_f32 v%d, v%d, v%d' % (t0, LD, LR, t1, LD, LI))
        e('v_mul_f32 v%d, 0x%08x, v%d\nv_mul_f32 v%d, 0.15915494, v%d' % (t0, f2u(math.log2(math.e)), t0, t1, t1))
        e('v_exp_f32 v%d, v%d\nv_rndne_f32 v%d, v%d\nv_sub_f32 v%d, v%d, v%d' % (t0, t0, t2, t1, t1, t1, t2))
        e('v_cos_f32 v%d, v%d\nv_sin_f32 v%d, v%d' % (t2, t1, t1, t1))
        e('v_mul_f32 v%d, v%d, v%d\nv_mul_f32 v%d, v%d, v%d' % (cA, t0, t2, t1, t0, t1))
        sg = T2 + 8
        e('v_lshlrev_b32 v%d, 28, v%d\nv_and_b32 v%d, 0x80000000, v%d\nv_xor_b32 v%d, v%d, v%d' % (sg, j, sg, sg, cSB, sg, t1))
        e('v_mul_f32 v%d, v%d, v%d\nv_fmac_f32 v%d, v%d, v%d\nv_rcp_f32 v%d, v%d' % (t0, LR, LR, t0, LI, LI, t0, t0))
        e('v_add_f32 v%d, -1.0, v%d' % (t2, cA))
        e('v_mul_f32 v%d, v%d, v%d\nv_fmac_f32 v%d, v%d, v%d' % (cCO, t2, LR, cCO, t1, LI))
        e('v_mul_f32 v%d, v%d, v%d\nv_fma_f32 v%d, -v%d, v%d, v%d' % (cCO + 1, t2, LI, cCO + 1, t1, LR, cCO + 1))
        e('v_mul_f32 v%d, v%d, v%d\nv_mul_f32 v%d, v%d, v%d\nv_xor_b32 v%d, v%d, v%d' % (cCO, cCO, t0, cCO + 1, cCO + 1, t0, cCO, sg, cCO))
        def sq(d, s):
            e('v_mul_f32 v%d, v%d, v%d\nv_add_f32 v%d, v%d, v%d' % (t0, s + 1, s + 1, t2, s, s))
            e('v_fma_f32 v%d, v%d, v%d, -v%d\nv_mul_f32 v%d, v%d, v%d' % (d, s, s, t0, d + 1, t2, s + 1))
        sq(c16, cA); sq(c32, c16); sq(c16, c32); sq(c64, c16);
        e('v_mov_b32 v%d, v%d\nv_mov_b32 v%d, v%d' % (c16, c64, c16 + 1, c64 + 1))
        sq(c32, c16); sq(c64, c32); sq(c128, c64)
        e('v_cmp_eq_u32 vcc, 0, v%d' % hi)
        e('v_cndmask_b32 v%d, v%d, 1.0, vcc\nv_cndmask_b32 v%d, v%d, 0, vcc' % (cMU, c16, cMU + 1, c16 + 1))
        e('s_add_u32 s%d, s%d, 1\nv_sub_u32 v%d, s%d, v%d\nv_lshrrev_b32 v%d, 1, v%d\nv_mul_lo_u32 v%d, v%d, s%d' % (sT0, sR, t0, sT0, hi, t0, t0, vEXP, t0, sNONCE))
        VS = [(4, x) for x in self.seq]; self.seq = []
        for b in range(2):
            for k in range(8):
                e('v_lshlrev_b32 v%d, 16, v%d\nv_and_b32 v%d, 0xffff0000, v%d' % (ACC(b, 0) + 2 * k, GA + 8 * b + k, ACC(b, 0) + 2 * k + 1, GA + 8 * b + k))
        VS += [(41, x) for x in self.seq]; self.seq = keep

        def sreads(cb):
            o = []
            for kq in range(4):
                o.append(I('ds_read_b128 %s, v%d offset:%d' % (vr(FR + (cb & 1) * 16 + 4 * kq, 4), aB + kq, (cb % 6) * 4096)))
            for kq in range(4):
                for t in range(2):
                    o.append(I('ds_read_b128 %s, v%d offset:%d' % (ar(XA(4 * cb + kq, t), 4), aX + kq, cb * 8192 + t * 4096)))
            return o
        def wreads(kk):
            F = 7 + (kk >> 1); d = self.fills[F][2 * (kk & 1):2 * (kk & 1) + 2]
            base = FR + (kk % 3) * 8; off = (F % 6) * 4096 + (kk & 1) * 2048
            return [I('ds_read_b64_tr_b16 %s, v%d offset:%d' % (vr(base + 4 * b + 2 * h, 2), aW1 + b, off + 512 * h), deps=d)
                    for b in range(2) for h in range(2)]
        e('s_barrier', deps=xd[0] + self.fills[0])
        self.seq += self.stamp()
        rd = {0: sreads(0)}
        self.seq += rd[0]
        mf = []; pre = {}; post = {}
        for cb in range(7):
            for kq in range(4):
                for t in range(2):
                    c = '0' if (cb == 0 and kq == 0) else vr(U + 16 * t, 16)
                    mf.append(I('v_mfma_f32_32x32x16_bf16 %s, %s, %s, %s' % (vr(U + 16 * t, 16), ar(XA(4 * cb + kq, t), 4), vr(FR + (cb & 1) * 16 + 4 * kq, 4), c)))
            g0 = 8 * cb
            fl = self.fill(cb + 6)
            for x in fl:
                if x.kind == 'dma': x.deps += rd[cb][:4]
            if cb < 6:
                rd[cb + 1] = sreads(cb + 1)
                post[g0] = [I('s_barrier', deps=xd[cb + 1] + self.fills[cb + 1])] + rd[cb + 1][0:2]
                for k in range(5): post[g0 + 1 + k] = rd[cb + 1][2 + 2 * k:4 + 2 * k]
                nh = len(fl) - 4
                post[g0 + 1] = fl[:nh + 1] + post[g0 + 1]
                post[g0 + 3] = post[g0 + 3] + [fl[nh + 1]]
                post[g0 + 6] = [fl[nh + 2]]
                post[g0 + 7] = [fl[nh + 3]]
            else:
                nh = len(fl) - 4
                post[g0] = fl[:nh + 1]
                post[g0 + 2] = [fl[nh + 1]]; post[g0 + 4] = [fl[nh + 2]]; post[g0 + 6] = [fl[nh + 3]]
        left = self.weave(mf, pre, post, VS, budget=5)
        assert not left
        k = [i for i, x in enumerate(self.seq) if x is mf[-3]][0]
        keep = self.seq[k + 1:]; self.seq = self.seq[:k + 1]
        e('s_cmp_eq_u32 s%d, 1\ns_cbranch_scc1 L_z1\ns_cmp_eq_u32 s%d, 2\ns_cbranch_scc1 L_z2\ns_cmp_eq_u32 s%d, 3\ns_cbranch_scc1 L_z3' % (sW, sW, sW))
        e('L_z0:', tag='zbeg')
        self.seq += keep
        self.seq += self.stamp()

        wr = {0: wreads(0), 1: wreads(1)}
        hA, hB = T2, T2 + 2
        sc1 = []
        for r in range(1, 16):
            prev = [U + 16 * t if r == 1 else (hA, hB)[t] + ((r - 1) & 1) for t in range(2)]
            cur = [(hA, hB)[t] + (r & 1) for t in range(2)]
            for t in range(2): sc1.append(I('v_fma_f32 v%d, v%d, v%d, v%d' % (cur[t], cA, prev[t], U + 16 * t + r)))
            for t in range(2): sc1.append(I('v_fmac_f32_dpp v%d, v%d, -v%d %s' % (cur[t], prev[t], cSB, DPP)))
        eA, eB = hA + 1, hB + 1
        mf = []
        for n in range(7):
            for t in range(2):
                m = I('v_mfma_f32_32x32x16_bf16 %s, %s, %s, %s' % (ar(ZA + 16 * t, 16), vr(GW[n], 4), ar(XA(n, t), 4), '0' if n == 0 else ar(ZA + 16 * t, 16)))
                m.alt = ['v_mfma_f32_32x32x16_bf16 %s, %s, %s, %s' % (ar(ZA + 16 * t, 16), vr(GW[n], 4), ar(XA(7 * w + n, t), 4), '0' if n == 0 else ar(ZA + 16 * t, 16)) for w in range(4)]
                mf.append(m)
        left = self.weave(mf, {}, {0: wr[0], 9: wr[1][:2], 11: wr[1][2:]}, [(1, x) for x in sc1], budget=5)
        e('L_zend:', tag='zend')

        V = [(0, x) for _, x in left]
        def add(k, lst): V.extend((4 * k, x) for x in lst)
        ta, tb = T2 + 4, T2 + 5
        seq = [I('v_mul_f32_dpp v%d, v%d, v%d %s' % (ta, eA, cCO + 1, DPP)), I('v_mul_f32_dpp v%d, v%d, v%d %s' % (tb, eB, cCO + 1, DPP)),
               I('v_fmac_f32 v%d, v%d, v%d' % (ta, cCO, eA)), I('v_fmac_f32 v%d, v%d, v%d' % (tb, cCO, eB)),
               I('v_accvgpr_read_b32 v%d, a%d' % (T, ZA)), I('v_accvgpr_read_b32 v%d, a%d' % (T + 1, ZA + 16)),
               I('v_permlane32_swap_b32 v%d, v%d' % (ta, tb)),
               I('v_cmp_gt_u32 vcc, 32, v%d' % vL), I('v_mov_b32 v%d, 0' % vZ0)]
        seq += self.cmul(tb, ta, c16)
        seq += [I('v_cndmask_b32 v%d, v%d, v%d, vcc' % (T, T + 1, T)), I('v_mov_b32 v%d, v%d' % (vT0, tb)), I('v_mov_b32 v%d, v%d' % (vZ1, ta))]
        zw = I('ds_write_b32 v%d, v%d' % (aZW, T))
        pe = T2 + 7 if (T2 + 7) % 2 == 0 else T2 + 6
        seq += [zw, I('v_permlane32_swap_b32 v%d, v%d' % (vT0, tb)), I('v_mov_b32 v%d, s%d' % (pe + 1, sNONCE)),
                I('v_mov_b32 v%d, v%d' % (pe, tb)), I('v_permlane32_swap_b32 v%d, v%d' % (vZ0, vZ1))]
        seq += self.cmul(pe, vT0, c32)
        seq += [I('buffer_store_dwordx2 %s, v%d, %s, 0 offen %s' % (vr(pe, 2), vPB, sr(SST, 4), p['stflag']))]
        add(0, seq)
        zr = GA
        seq = [I('s_barrier', deps=[zw]), I('ds_read_b128 %s, v%d' % (vr(zr, 4), aZR)), I('ds_read_b128 %s, v%d offset:512' % (vr(zr + 4, 4), aZR))]
        scal = []
        for t in range(2):
            for r in range(0, 16, 2):
                a, b = U + 16 * t + r, U + 16 * t + r + 1
                scal += [I('v_mul_f32_dpp v%d, v%d, v%d %s' % (T, a, cCO + 1, DPP)), I('v_mul_f32_dpp v%d, v%d, v%d %s' % (T + 1, b, cCO + 1, DPP)),
                         I('v_fma_f32 v%d, v%d, v%d, v%d' % (a, cCO, a, T)), I('v_fma_f32 v%d, v%d, v%d, v%d' % (b, cCO, b, T + 1))]
        seq += scal[:16]
        g = [zr + 8, zr + 9]; gm = [zr + 10, zr + 11]
        gs = []
        for st in range(12):
            for t in range(2):
                z = zr + 4 * t
                gs.append([
                    'v_add_f32 v%d, v%d, v%d' % (z, z, z + 1), 'v_add_f32 v%d, v%d, v%d' % (z + 2, z + 2, z + 3),
                    'v_add_f32 v%d, v%d, v%d' % (z, z, z + 2), 'v_cvt_pk_bf16_f32 v%d, v%d, v%d' % (z, z, z),
                    'v_and_b32 v%d, 0xffff0000, v%d' % (z, z), 'v_mul_f32 v%d, 0x%08x, v%d' % (z, f2u(-math.log2(math.e)), z),
                    'v_exp_f32 v%d, v%d' % (z, z), 'v_add_f32 v%d, 1.0, v%d' % (z, z), 'v_rcp_f32 v%d, v%d' % (z, z),
                    'v_cvt_pk_bf16_f32 v%d, v%d, v%d' % (z, z, z), 'v_and_b32 v%d, 0xffff0000, v%d' % (g[t], z),
                    'v_sub_f32 v%d, 1.0, v%d' % (z, g[t])][st])
        for t in range(2): gs.append('v_cvt_pk_bf16_f32 v%d, v%d, v%d' % (zr + 4 * t, zr + 4 * t, zr + 4 * t))
        for t in range(2): gs.append('v_and_b32 v%d, 0xffff0000, v%d' % (gm[t], zr + 4 * t))
        for t in range(2): gs.append('v_max_f32 v%d, 0x%08x, v%d' % (zr + 4 * t, f2u(1e-30), gm[t]))
        for t in range(2): gs.append('v_rcp_f32 v%d, v%d' % (vIG + t, zr + 4 * t))
        gs.append('v_cndmask_b32 v%d, v%d, v%d, vcc' % (zr, g[1], g[0]))
        gs.append(['s_cmp_ge_u32 s%d, 2' % sW, 's_cselect_b64 vcc, -1, 0'])
        gs.append('v_add_f32 v%d, v%d, v%d' % (zr, zr, zr))
        gs.append('v_cndmask_b32 v%d, v%d, v%d, vcc' % (vG, g[0], g[1]))
        gs.append('v_cndmask_b32 v%d, v%d, v%d, vcc' % (vGM, gm[0], gm[1]))
        seq += [[I(y) for y in x] if isinstance(x, list) else I(x) for x in gs]
        gw_ = I('ds_write_b32 v%d, v%d' % (aGW, zr))
        seq += [gw_] + scal[16:]
        add(p['bz_k'], seq)
        def gloads():
            return [I('buffer_load_dwordx2 %s, v%d, %s, 0 offen offset:%d %s' % (vr(GA + 2 * q, 2), vG0 if q < 8 else vG1, sr(SST, 4), (q & 7) * 512, p['ldflag'])) for q in range(16)]
        def gcheck():
            o = [I('v_add3_u32 v%d, v%d, v%d, v%d' % (T, GA + 1, GA + 3, GA + 5)), I('v_add3_u32 v%d, v%d, v%d, v%d' % (T + 1, GA + 7, GA + 9, GA + 11))]
            for k in range(2):
                o += [I('v_add3_u32 v%d, v%d, v%d, v%d' % (T, T, GA + 13 + 8 * k, GA + 15 + 8 * k)), I('v_add3_u32 v%d, v%d, v%d, v%d' % (T + 1, T + 1, GA + 17 + 8 * k, GA + 19 + 8 * k))]
            o += [I('v_add3_u32 v%d, v%d, v%d, v%d' % (T, T, GA + 29, GA + 31)), I('v_add_u32 v%d, v%d, v%d' % (T, T, T + 1)),
                  I('v_cmp_ne_u32 vcc, v%d, v%d' % (T, vEXP))]
            return o
        add(p['gather_k'], gloads())
        seq = gcheck() + [[I('s_cbranch_vccnz L_rs'), I('L_rs_back:')]]
        self.tail += [I('L_rs:'), I('s_cmp_eq_u32 s%d, 0' % sSPIN), I('s_cbranch_scc1 L_rs_back'), I('s_sub_u32 s%d, s%d, 1' % (sSPIN, sSPIN))] + gloads() + gcheck() + \
                     [I('s_cbranch_vccnz L_rs'), I('s_branch L_rs_back')]
        for q in range(14, -1, -1): seq += self.cmul(GA + 2 * q, GA + 2 * q + 2, c128)
        cc, ct_ = T2 + 4, T2 + 5
        seq += [I('v_mov_b32 v%d, v%d' % (cc, GA)), I('v_mov_b32 v%d, v%d' % (ct_, GA))]
        g2r = [I('ds_read_b128 %s, v%d offset:%d' % (vr(GA + 16 * t + 4 * k, 4), aGR, 128 * t + 16 * k), deps=[gw_]) for t in range(2) for k in range(4)]
        seq += [I('v_permlane32_swap_b32 v%d, v%d' % (cc, ct_))] + g2r[:2]
        seq += self.cmul(cc, ct_, c64) + g2r[2:4]
        seq += self.cmul(vT0, cc, c32) + self.cmul(vZ0, cc, cMU) + g2r[4:6] + self.cmul(vZ1, vT0, cMU) + g2r[6:]
        for r in range(16):
            prev = [(vZ0, vZ1)[t] if r == 0 else U + 16 * t + r - 1 for t in range(2)]
            for t in range(2): seq.append(I('v_fmac_f32 v%d, v%d, v%d' % (U + 16 * t + r, cA, prev[t])))
            for t in range(2): seq.append(I('v_fmac_f32_dpp v%d, v%d, v%d %s' % (U + 16 * t + r, prev[t], cSB, DPP)))
        hw = []
        for t in range(2):
            for r in range(16): seq.append(I('v_mul_f32 v%d, v%d, v%d' % (GA + 16 * t + r, U + 16 * t + r, GA + 16 * t + r)))
            for k in range(8): seq.append(I('v_cvt_pk_bf16_f32 v%d, v%d, v%d' % (GA + 16 * t + k, GA + 16 * t + 2 * k, GA + 16 * t + 2 * k + 1)))
            for u in range(2):
                if t or u: seq.append(I('v_xor_b32 v%d, %d, v%d' % (T + 2 + u, (4 * t + u) << 4, aHS)))
                x = I('ds_write_b128 v%d, %s' % (T + 2 + u if (t or u) else aHS, vr(GA + 16 * t + 4 * u, 4))); hw.append(x); seq.append(x)
        add(p['check_k'], seq)

        mf = []; pre = {}; post = {}
        for kk in range(28):
            base = FR + (kk % 3) * 8
            for b in range(2):
                for t in ((1, 0) if kk == 0 else (0, 1)):
                    c = vr(ACC(b, 0), 16) if kk == 0 else vr(ACC(b, t), 16)
                    mf.append(I('v_mfma_f32_32x32x16_bf16 %s, %s, %s, %s' % (vr(ACC(b, t), 16), vr(base + 4 * b, 4), ar(XA(kk, t), 4), c)))
            g0 = 4 * kk
            for k in range(4): post[g0 + k] = []
            if kk & 1:
                fl = self.fill(7 + (kk >> 1) + 6); nh = len(fl) - 4
                for x in fl:
                    if x.kind == 'dma': x.deps += wr[kk]
                post[g0 + 2] += fl[:nh + 1]; post[g0 + 3] += [fl[nh + 1]]
                pend = fl[nh + 2:]
                if kk == 27: post[g0 + 3] += pend
            elif kk:
                post[g0 + 2] += [pend[0]]; post[g0 + 3] += [pend[1]]
            if kk + 2 < 28:
                wr[kk + 2] = wreads(kk + 2)
                post[g0] += wr[kk + 2][:2]; post[g0 + 1] += wr[kk + 2][2:]
        left = self.weave(mf, pre, post, V, budget=5)
        self.seq += self.stamp()
        self.seq += [x for _, x in left]
        self.seq += self.stamp()

        sreadsP = {}
        def preads(n):
            F = 21 + n; slot = F % 6; o = []
            for u in range(8):
                a = FIFO + ((8 * n + u) % NFIFO) * 4
                if n % 3 == 0:
                    o.append([I('ds_read_b128 %s, v%d offset:%d' % (ar(a, 4), aC + u, slot * 4096))])
                else:
                    reg = u >> 1; off = (reg & 1) * RING + slot * 4096 + (u & 1) * 1024
                    o.append([I('ds_read_b64_tr_b16 %s, v%d offset:%d' % (ar(a + 2 * h, 2), aW2 + (reg >> 1), off + 512 * h)) for h in range(2)])
            sreadsP[n] = [x for y in o for x in y]
            return o
        def stage_open(n, extra=()):
            deps = list(self.fills[21 + n]) + (sreadsP[n - 1] if n else []) + list(extra)
            o = [I('s_barrier', deps=deps)]
            fl = self.fill(21 + n + 5) if (n >= 1 and n + 5 < 21) else []
            return o, fl

        A0 = p['ahead0']
        gel = []
        TT = T2 + 1 if (T2 + 1) % 2 == 0 else T2
        OO = (FR, FR + 4)
        cnt = 0
        for b in range(2):
            for u in range(2):
                for t in range(2):
                    v = ACC(b, t) + 8 * u; o = OO[cnt & 1]; blk = []
                    pr = lambda x, k: vr(x + 2 * k, 2)
                    for k in range(4): blk.append(I('v_pk_mul_f32 %s, %s, %s' % (pr(TT, k), pr(v, k), pr(v, k))))
                    for k in range(4): blk.append(I('v_pk_fma_f32 %s, %s, %s, %s op_sel:[0,0,1] op_sel_hi:[1,0,1]' % (pr(TT, k), pr(TT, k), vr(vGC, 2), vr(vGC, 2))))
                    for k in range(4): blk.append(I('v_pk_mul_f32 %s, %s, %s' % (pr(TT, k), pr(v, k), pr(TT, k))))
                    for k in range(8): blk.append(I('v_exp_f32 v%d, v%d' % (TT + k, TT + k)))
                    for k in range(4): blk.append(I('v_pk_fma_f32 %s, %s, %s, %s op_sel:[0,%d,%d] op_sel_hi:[1,%d,%d]' % (pr(TT, k), pr(TT, k), vr(vIG, 2), vr(vIG, 2), t, t, t, t)))
                    for k in range(8): blk.append(I('v_rcp_f32 v%d, v%d' % (TT + k, TT + k)))
                    for k in range(4): blk.append(I('v_pk_mul_f32 %s, %s, %s' % (pr(TT, k), pr(v, k), pr(TT, k))))
                    for k in range(4): blk.append(I('v_cvt_pk_bf16_f32 v%d, v%d, v%d' % (o + k, TT + 2 * k, TT + 2 * k + 1)))
                    x = I('ds_write_b128 v%d, %s offset:%d' % (aHW, vr(o, 4), ((b * 2 + u) * 2 + t) * 1024)); hw.append(x); blk.append(x)
                    gel.append(blk); cnt += 1
        himg = [I('ds_read_b64_tr_b16 %s, v%d offset:%d' % (ar(HFR + 4 * m + 2 * h, 2), aHI, m * 2048 + 512 * h)) for m in range(8) for h in range(2)]
        nopen = 0
        for i, blk in enumerate(gel):
            extra = []
            if i >= 1 and nopen < A0 and i % max(1, 7 // max(A0, 1)) == 0:
                b_, fl = stage_open(nopen, hw[:4] if nopen == 0 else ())
                extra = b_ + fl + [x for y in preads(nopen) for x in y] + (himg if nopen == 0 else [])
                nopen += 1
            step = max(1, len(blk) // (len(extra) + 1)); k = 0
            for n_, x in enumerate(blk):
                self.seq.append(x)
                if k < len(extra) and (n_ + 1) % step == 0: self.seq.append(extra[k]); k += 1
            self.seq += extra[k:]
        self.seq += self.stamp()
        if nopen == 0:
            b_, fl = stage_open(0, hw); self.seq += b_; first = [x for y in preads(0) for x in y]
            self.seq += himg[:4] + first[:2] + himg[4:8] + first[2:4] + himg[8:] + first[4:]; nopen = 1
        else:
            e('s_barrier', deps=hw)
        hfr = [I('ds_read_b128 %s, v%d offset:%d' % (ar(HFR + 32 + 4 * k, 4), aHR, k * 2048)) for k in range(16)]
        for k in range(3):
            for q in range(2): e('v_mov_b32 v%d, s%d' % (PK[q] + 4 * k + 3, sNONCE))
        e('v_mov_b32 v%d, 0\nv_mov_b32 v%d, 0' % (PK[0] + 10, PK[1] + 10))
        e('s_mul_i32 s%d, s%d, 12288\ns_mul_i32 s%d, s%d, 3072\ns_add_u32 s%d, s%d, s%d\ns_mov_b32 s%d, s%d' % (sPUB, sS, sT1, sW, sPUB, sPUB, sT1, sT2, sS))
        self.seq += self.stamp()

        mf = []; pre = {}; post = {}
        for g_ in range(7):
            for k in range(24):
                i = 24 * g_ + k; acc = P2[g_ & 1]
                mf.append(I('v_mfma_f32_32x32x16_bf16 %s, %s, %s, %s' % (vr(acc, 16), ar(FIFO + (i % NFIFO) * 4, 4), ar(HFR + 4 * k, 4), '0' if k == 0 else vr(acc, 16))))
                post[i] = []
        for k in range(8): post[k] += hfr[2 * k:2 * k + 2]
        last = 8 * 20 - 4
        rem = list(range(nopen, 21))
        for idx, n in enumerate(rem):
            pos = max(0, min(8 * n - 4, int(round(idx * last / max(1, len(rem) - 1))))) if A0 else max(0, 8 * n - 4)
            pos = max(pos, 8 * n + 8 - NFIFO)
            b_, fl = stage_open(n); rds = preads(n)
            post[pos] += b_
            nh = len(fl) - 4
            for u in range(8):
                gp = max(min(pos + u, 8 * n + u - 2), pos, 8 * n + u - NFIFO)
                post[gp] = post[gp] + rds[u]
            if fl:
                post[pos + 1] += fl[:nh + 1]
                for q in range(1, 4): post[pos + 1 + 2 * q] += [fl[nh + q]]
        V = []
        seq = [I('buffer_load_dwordx4 %s, v%d, %s, 0 offen offset:%d' % (vr(RAW + 4 * k, 4), vXE, sr(SX, 4), 16 * k)) for k in range(2)]
        seq += [I('global_load_dwordx4 %s, v%d, s[20:21] offset:%d' % (vr(RAW + 8 + 4 * k, 4), vDE, 16 * k)) for k in range(2)]
        seq += [I('global_load_dwordx4 %s, v%d, s[30:31] offset:%d' % (vr(RAW + 16 + 4 * k, 4), vDE, 16 * k)) for k in range(2)]
        V += [(10, x) for x in seq]
        def publish(n):
            acc = P2[n & 1]; pk = PK[n & 1]; o = []
            o += [I('s_add_u32 s%d, s%d, 1' % (sT2, sT2)), [I('s_cmp_eq_u32 s%d, 7' % sT2), I('s_cselect_b32 s%d, 0, s%d' % (sT2, sT2))],
                  I('s_mul_i32 s%d, s%d, 86016' % (sT3, sT2)), I('s_add_u32 s%d, s%d, s%d' % (sT3, sT3, sPUB))]
            for k in range(8):
                o.append(I('v_cvt_pk_bf16_f32 v%d, v%d, v%d' % (pk + k + k // 3, acc + 2 * k, acc + 2 * k + 1)))
                if k in (2, 5, 7):
                    q = k // 3
                    o.append(I('buffer_store_dwordx4 %s, v%d, %s, s%d offen offset:%d %s' % (vr(pk + 4 * q, 4), vL16, sr(SIN, 4), sT3, q * 1024, p['stflag'])))
            return o
        base = []
        for k in range(8):
            x, d, b = RAW + k, RAW + 8 + k, RAW + 16 + k; s0 = SUM + 2 * k
            base += [I('v_lshlrev_b32 v%d, 16, v%d' % (T, x)), I('v_and_b32 v%d, 0xffff0000, v%d' % (T + 1, x)),
                     I('v_lshlrev_b32 v%d, 16, v%d' % (T + 2, d)), I('v_and_b32 v%d, 0xffff0000, v%d' % (T + 3, d)),
                     I('v_mul_f32 v%d, v%d, v%d' % (T, T, T + 2)), I('v_mul_f32 v%d, v%d, v%d' % (T + 1, T + 1, T + 3)),
                     I('v_lshlrev_b32 v%d, 16, v%d' % (s0, b)), I('v_cvt_pk_bf16_f32 v%d, v%d, v%d' % (T, T, T + 1)),
                     I('v_and_b32 v%d, 0xffff0000, v%d' % (s0 + 1, b)), I('v_mul_f32 v%d, v%d, v%d' % (s0, vGM, s0)),
                     I('v_and_b32 v%d, 0xffff0000, v%d' % (T + 1, T)), I('v_lshlrev_b32 v%d, 16, v%d' % (T, T)),
                     I('v_mul_f32 v%d, v%d, v%d' % (s0 + 1, vGM, s0 + 1)),
                     I('v_fmac_f32 v%d, v%d, v%d' % (s0, vG, T)), I('v_fmac_f32 v%d, v%d, v%d' % (s0 + 1, vG, T + 1))]
        sSRC = [4, 5, 6, 7, 8, 9] if not p['diag'] else [32, 33, 38, 39, 96, 97]
        def ploads(n):
            return [I('buffer_load_dwordx4 %s, v%d, %s, s%d offen offset:%d %s' % (vr(PIN + 12 * n + 4 * q, 4), vL16, sr(SIN, 4), sSRC[n], q * 1024, p['ldflag'])) for q in range(3)]
        def pcheck(n):
            r = PIN + 12 * n
            return [I('v_add3_u32 v%d, v%d, v%d, v%d' % (T + 4, r + 3, r + 7, r + 11)), I('v_cmp_ne_u32 vcc, s%d, v%d' % (sN3, T + 4))]
        def pacc(n):
            r = PIN + 12 * n
            o = pcheck(n) + [[I('s_cbranch_vccnz L_rp%d' % n), I('L_rp%d_back:' % n)]]
            self.tail += [I('L_rp%d:' % n), I('s_cmp_eq_u32 s%d, 0' % sSPIN), I('s_cbranch_scc1 L_rp%d_back' % n), I('s_sub_u32 s%d, s%d, 1' % (sSPIN, sSPIN))] + ploads(n) + pcheck(n) + \
                         [I('s_cbranch_vccnz L_rp%d' % n), I('s_branch L_rp%d_back' % n)]
            for k in range(8):
                o.append(I('v_dot2c_f32_bf16 v%d, s%d, v%d' % (SUM + 2 * k, sLO, r + k + k // 3)))
            for k in range(8):
                o.append(I('v_dot2c_f32_bf16 v%d, s%d, v%d' % (SUM + 2 * k + 1, sHI, r + k + k // 3)))
            return o
        srcs = [I('s_mul_i32 s%d, s%d, 86016' % (sT1, sS)), I('s_mul_i32 s%d, s%d, 3072' % (sXO, sW)), I('s_add_u32 s%d, s%d, s%d' % (sT1, sT1, sXO)),
                I('s_mov_b32 s%d, s%d' % (sBO, sS))]
        for n in range(6):
            srcs += [I('s_sub_u32 s%d, s%d, 1' % (sBO, sBO)), I('s_cselect_b32 s%d, 6, s%d' % (sBO, sBO)),
                     I('s_mul_i32 s%d, s%d, 12288' % (sXO, sBO)), I('s_add_u32 s%d, s%d, s%d' % (sSRC[n], sXO, sT1))]
        self.seq += srcs
        endq = []
        for n in range(7):
            g0 = 24 * n
            if n >= 1: V += [(g0 + 2, x) for x in publish(n - 1)]
            if n == 1: V += [(g0 + 8, x) for x in base[:60]]
            if n == 2: V += [(g0 + 8, x) for x in base[60:]]
            for k in range(6):
                if p['poll'][k] == n: V += [(g0 + 8, x) for x in ploads(k)]
            for k in range(6):
                if p['poll'][k] + 1 == n: V += [(g0 + 8, x) for x in pacc(k)]
        left = self.weave(mf, pre, post, V, budget=5)
        self.seq += [x for _, x in left]
        self.seq += self.stamp()
        for k in range(6):
            if p['poll'][k] >= 7: self.seq += ploads(k)
        for k in range(6):
            if p['poll'][k] >= 6:
                for x in pacc(k): self.seq += x if isinstance(x, list) else [x]
        self.seq += self.stamp()
        for q in range(4):
            for k in range(2):
                e('v_pk_add_f32 %s, %s, %s' % (vr(SUM + 4 * q + 2 * k, 2), vr(SUM + 4 * q + 2 * k, 2), vr(P2[0] + 4 * q + 2 * k, 2)))
            e('buffer_store_dwordx4 %s, v%d, %s, 0 offen offset:%d %s' % (vr(SUM + 4 * q, 4), vOUT, sr(SOUT, 4), 16 * q, p['outflag']))
        e('s_sub_u32 s%d, s%d, 31\ns_or_b32 s%d, s%d, s%d\ns_or_b32 s%d, s%d, s%d\ns_cbranch_scc1 L_fin' % (sT0, sR, sT0, sT0, sS, sT0, sT0, sW))
        e('v_mov_b32 v%d, s%d\nv_mov_b32 v%d, 0\ns_mov_b64 exec, 1' % (T, sNONCE, T + 1))
        e('global_store_dword v%d, v%d, s[36:37] sc1' % (T + 1, T))
        e('s_mov_b64 exec, -1')
        e('L_fin:')
        if p['diag']:
            e('s_waitcnt vmcnt(0)')
            self.seq += self.stamp()
            e('s_memrealtime s[0:1]\ns_waitcnt lgkmcnt(0)')
            lst = [98, 100] + self.STAMPS[:self.nstamp] + [0]
            if p.get('enc'):
                i_, j_, wg = p['enc']; st = [98] + self.STAMPS
                e('s_sub_u32 s%d, s2, %d\ns_or_b32 s%d, s%d, s%d\ns_cbranch_scc1 L_exit' % (sT0, wg, sT0, sT0, sW))
                e('s_sub_u32 s%d, s%d, s%d' % (sT1, st[j_], st[i_]))
                e('L_enc:\ns_memrealtime s[2:3]\ns_waitcnt lgkmcnt(0)\ns_sub_u32 s2, s2, s0\ns_cmp_lt_u32 s2, s%d\ns_cbranch_scc1 L_enc\ns_endpgm' % sT1)
            e('s_lshl_b32 s%d, s2, 2\ns_add_u32 s%d, s%d, s%d\ns_lshl_b32 s%d, s%d, 6\ns_add_u32 s%d, s%d, %d' % (sT0, sT0, sT0, sW, sT0, sT0, sT0, sT0, WS_DIAG))
            for k, r in enumerate(lst): e('v_mov_b32 v%d, s%d' % (64 + k, r))
            e('v_mov_b32 v%d, s%d\nv_mov_b32 v%d, s%d\ns_mov_b64 exec, 1' % (79, sSPIN, T, sT0))
            for q in range(4): e('global_store_dwordx4 v%d, %s, s[36:37] offset:%d' % (T, vr(64 + 4 * q, 4), 16 * q))
        e('L_exit:\ns_endpgm')

    def helper(self):
        g = Gen(); e = g.e
        e('L_helper:')
        e('s_and_b32 s%d, s%d, 3\ns_lshl_b32 s%d, s%d, 2\ns_add_u32 s%d, s%d, s%d' % (sT0, sT0, sT0, sT0, sT0, sT0, sW))
        e('s_mul_i32 s%d, s%d, 3' % (sT1, sT1))
        e('s_getpc_b64 s[38:39]\nL_pc:')
        e('s_sub_u32 s38, s38, L_pc-%s\ns_subb_u32 s39, s39, 0' % KNAME)
        e('v_lshl_add_u32 v2, s%d, 6, v%d\nv_lshlrev_b32 v3, 7, v2\nv_min_u32 v3, L_end-%s-4, v3' % (sT0, vL, KNAME))
        e('s_cmp_ge_u32 s%d, 4\ns_cbranch_scc1 L_h1' % sT0)
        e('global_load_dword v10, v3, s[38:39]')
        e('L_h1:\ns_waitcnt lgkmcnt(0)')
        e('v_lshrrev_b32 v4, 4, v2\nv_and_b32 v5, 15, v2\nv_mul_u32_u24 v4, 3584, v4\nv_lshl_add_u32 v4, v5, 7, v4')
        e('s_lshl_b32 s%d, s%d, 9\nv_add_u32 v4, s%d, v4' % (sT2, sT1, sT2))
        for k in range(7):
            e('global_load_dword v%d, v4, s[24:25]' % (11 + k))
            if k < 6: e('v_add_u32 v4, %d, v4' % (64 * 3584))
        e('v_lshrrev_b32 v6, 2, v2\nv_and_b32 v5, 3, v2\nv_lshlrev_b32 v5, 7, v5\ns_lshl_b32 s%d, s%d, 7\nv_add_u32 v5, s%d, v5' % (sT2, sT1, sT2))
        e('v_add_u32 v7, 256, v6\nv_min_u32 v7, 447, v7\nv_mul_u32_u24 v6, 896, v6\nv_mul_u32_u24 v7, 896, v7\nv_add_u32 v6, v6, v5\nv_add_u32 v7, v7, v5')
        e('s_mul_i32 s%d, s%d, %d\nv_lshlrev_b32 v8, 7, v2\nv_add_u32 v8, s%d, v8' % (sT2, sT1, 256 * 896, sT2))
        e('s_waitcnt vmcnt(0)')
        e('global_load_dword v10, v6, s[14:15]\nglobal_load_dword v11, v6, s[16:17]\nglobal_load_dword v12, v7, s[14:15]\nglobal_load_dword v13, v7, s[16:17]')
        for k in range(7):
            e('global_load_dword v%d, v8, s[28:29]' % (14 + k))
            if k < 6: e('v_add_u32 v8, %d, v8' % (1024 * 128))
        e('s_waitcnt vmcnt(0)\ns_endpgm')
        return g.seq

    def text(self):
        self.build()
        main = finish(self.seq)
        out = []; zb = None
        for k, x in enumerate(main):
            if x.tag == 'zbeg': zb = k
            if x.tag == 'zend': ze = k
        zalt = []
        for w in range(1, 4):
            zalt.append('L_z%d:' % w)
            zalt += [(x.alt[w] if x.alt else x.text) for x in main[zb + 1:ze]]
            zalt.append('s_branch L_zend')
        tail = []
        blk = []
        for x in self.tail:
            if x.kind == 'label' and blk: tail += finish([I('s_waitcnt vmcnt(0)')][:0] + blk); blk = []
            blk.append(x)
        tail += finish(blk)
        body = [x.text for x in main] + zalt + [x.text for x in tail]
        if self.p['helper']: body += [x.text for x in finish(self.helper())]
        body.append('L_end:')
        hdr = open('gated_mix__ssm_conv_s5__dense_activation_gelu__prompt.s.ref').read().split('; Override launch')[0]
        o = hdr + '; @launch grid=(256,1,1) block=(256,1,1) lds=%d\n' % LDS_BYTES
        o += '.amdgcn_target "amdgcn-amd-amdhsa--gfx950"\n.text\n.globl %s\n.p2align 8\n.type %s,@function\n%s:\n' % (KNAME, KNAME, KNAME)
        o += '\n'.join(('' if t.endswith(':') else '    ') + t for t in body) + '\n'
        o += '.section .rodata,"a"\n.p2align 6\n.amdhsa_kernel %s\n  .amdhsa_next_free_vgpr 512\n  .amdhsa_next_free_sgpr 102\n  .amdhsa_accum_offset 256\n' % KNAME
        o += '  .amdhsa_group_segment_fixed_size 0\n  .amdhsa_kernarg_size 144\n  .amdhsa_user_sgpr_count 2\n  .amdhsa_user_sgpr_kernarg_segment_ptr 1\n  .amdhsa_system_sgpr_workgroup_id_x 1\n.end_amdhsa_kernel\n'
        return o

if __name__ == '__main__':
    kw = json.loads(sys.argv[2]) if len(sys.argv) > 2 else {}
    open(sys.argv[1], 'w').write(Gen(**kw).text())
```

```python
import sys, json, math, struct
from asmgen import I, finish

KNAME = 'gated_mix__ssm_conv_s5__dense_activation_gelu__prompt_kernel'
RING = 24576; XH = 98304; HF = XH; HIMG = XH + 32768; MISC = XH + 57344
ZBUF = MISC; G2BUF = MISC + 1024; PARAM = MISC + 2048; LDS_BYTES = MISC + 6144
WS_ST = 4096; WS_IN = 1 << 20; WS_DIAG = 24 << 20
def f2u(x): return struct.unpack('<I', struct.pack('<f', x))[0]

DEF = dict(diag=0, gather_k=17, check_k=25, bz_k=2, a0=(), spin=1 << 18, helper=1, pl=(124, 128, 146, 150, 168, 168), pc=(150, 156, 168, 168, 168, 168),
           stflag='sc1', ldflag='sc1', outflag='', wsoff=0, nostate=0, nopub=0, bF=5, bP=5, rot=1, hwait=1, lead=6, outlds=1, nobar2=0, nodma2=0, nord2=0, rpg=3, pubgap=2, dgap=(0, 1, 2, 3))

def vr(a, n=1): return 'v%d' % a if n == 1 else 'v[%d:%d]' % (a, a + n - 1)
def ar(a, n=1): return 'a%d' % a if n == 1 else 'a[%d:%d]' % (a, a + n - 1)
def sr(a, n=1): return 's%d' % a if n == 1 else 's[%d:%d]' % (a, a + n - 1)
DPP = 'row_ror:8 row_mask:0xf bank_mask:0xf'

SX, SBR, SBI, SW1, SW2, SC, SST, SIN, SOUT = 40, 44, 48, 52, 56, 60, 64, 68, 72
sW, sS, sR, sRING, sXO, sBO, sW1O, sT0, sT1, sG, sW2B, sCB, sPUB, sT2 = range(76, 90)
sNONCE, sROT, sLO, sHI, sSPIN, sT3 = 90, 91, 92, 93, 94, 95
sTAB = [3, 38, 39, 96, 97, 22, 23]
sTG = [14, 15, 16, 17]
vL = 1
vE, vOx, vO, vB2, vB3, vC2, vC3 = 2, 3, 4, 5, 6, 7, 8
vW1, vW2 = 9, 13
aX, aB, aW1, aW2, aC = 17, 21, 25, 27, 29
aHI, aHW, aHR, aHS, vL16, vG0, vG1, vPB, aZW, aZR, aGW, aGR, vOUT, aXE, aDE = range(37, 52)
vGC, vIG, vG, vGM, vEXP = 52, 54, 56, 57, 58
T = 59
U = 64
def ACC(b, t): return 96 + (2 * b + t) * 16
FR = 160
GA = 192
cA, cSB, c16, c32, c64, c128, cCO, cMU = 224, 225, 226, 228, 230, 232, 234, 236
vZ0, vZ1, vT0 = 238, 239, 240
T2 = 241
def XA(kk, t): return (kk * 2 + t) * 4
ZA = 224
P2 = (64, 80); PK = (96, 104); PIN = 120; SUM = 192; RAW = 208; XRAW = 184; vMSK = 112; aOW, aOR = 113, 114
HFR = 0; FIFO = 96; NFIFO = 40

class Gen:
    def __init__(self, **kw):
        self.p = dict(DEF); self.p.update(kw)
        self.seq = []; self.tail = []; self.nstamp = 0

    def e(self, text, deps=(), tag=None):
        last = None
        for t in text.split('\n'):
            t = t.strip()
            if t:
                last = I(t, deps, tag); self.seq.append(last)
        return last

    STAMPS = [4, 6, 8, 10, 12, 18, 20, 24, 26, 28, 30, 32]
    def stamp(self):
        if not self.p['diag']: return []
        r = self.STAMPS[self.nstamp]; self.nstamp += 1
        return [I('s_memtime %s' % sr(r, 2))]

    def weave(self, mf, pre, post, valu=None, budget=5):
        valu = valu if valu is not None else []
        for i, m in enumerate(mf):
            for x in pre.get(i, []): self.seq.append(x)
            self.seq.append(m)
            used = len(pre.get(i + 1, []))
            for x in post.get(i, []): self.seq.append(x); used += 1
            while valu and used < budget and valu[0][0] <= i:
                x = valu.pop(0)[1]
                if isinstance(x, list): self.seq += x; used += len(x)
                else: self.seq.append(x); used += 2 if x.kind == 'trans' else 1
        out = []
        for g, x in valu: out += [(g, y) for y in x] if isinstance(x, list) else [(g, x)]
        return out

    def fill(self, F):
        slot = F % 6; out = []; d = []
        if F < 7:
            out.append(I('s_add_u32 m0, s%d, %d' % (sRING, slot * 4096)))
            out.append(I('s_add_u32 s%d, s%d, s%d' % (sT0, sBO, sTAB[F])))
            for q, (v, srd) in enumerate(((vE, SBR), (vO, SBI), (vB2, SBR), (vB3, SBI))):
                d.append(I('buffer_load_dwordx4 v%d, %s, s%d offen offset:%d lds' % (v, sr(srd, 4), sT0, q * 1024)))
        elif F < 21:
            n = F - 7
            out.append(I('s_add_u32 m0, s%d, %d' % (sRING, slot * 4096)))
            if n & 1: out.append(I('s_add_u32 s%d, s%d, %d' % (sT0, sT0, 32 * 3584)))
            else:
                out.append(I('s_mul_i32 s%d, s%d, 1792' % (sT0, sTAB[n >> 1])))
                out.append(I('s_add_u32 s%d, s%d, s%d' % (sT0, sT0, sW1O)))
            for q in range(4):
                d.append(I('buffer_load_dwordx4 v%d, %s, s%d offen offset:%d lds' % (vW1 + q, sr(SW1, 4), sT0, q * 1024)))
        else:
            n = F - 21; ty = n % 3
            out.append(I('s_add_u32 m0, s%d, %d' % (sRING, slot * 4096)))
            if ty == 0:
                out.append(I('s_add_u32 s%d, s%d, 1' % (sG, sG)))
                out.append(I('s_cmp_eq_u32 s%d, 7' % sG))
                out.append(I('s_cselect_b32 s%d, 0, s%d' % (sG, sG)))
                out.append(I('s_mul_i32 s%d, s%d, 57344' % (sT0, sG)))
                out.append(I('s_add_u32 s%d, s%d, s%d' % (sT0, sT0, sCB)))
                for q, v in enumerate((vE, vOx, vC2, vC3)):
                    d.append(I('buffer_load_dwordx4 v%d, %s, s%d offen offset:%d lds' % (v, sr(SC, 4), sT0, q * 1024)))
            else:
                if ty == 1:
                    out.append(I('s_lshl_b32 s%d, s%d, 7' % (sT0, sG)))
                    out.append(I('s_add_u32 s%d, s%d, s%d' % (sT0, sT0, sW2B)))
                else:
                    out.append(I('s_add_u32 s%d, s%d, %d' % (sT0, sT0, 128 * 896)))
                for q in range(4):
                    d.append(I('buffer_load_dwordx4 v%d, %s, s%d offen offset:%d lds' % (vW2 + q, sr(SW2, 4), sT0, q * 1024)))
        self.fills[F] = d
        return out + d

    def cmul(self, dst, x, c, neg=False):
        return [I('v_fmac_f32 v%d, v%d, v%d' % (dst, c, x)),
                I('v_fmac_f32_dpp v%d, v%d, %sv%d %s' % (dst, x, '-' if neg else '', c + 1, DPP))]

    def srd(self, d, base, nbytes):
        self.e('s_mov_b32 s%d, s%d\ns_mov_b32 s%d, s%d\ns_mov_b32 s%d, %d\ns_mov_b32 s%d, 0x20000' % (d, base, d + 1, base + 1, d + 2, nbytes, d + 3))

    def build(self):
        p = self.p; e = self.e; self.fills = {}
        if p['diag']:
            e('s_memtime s[98:99]\ns_memrealtime s[100:101]')
        e('s_load_dwordx16 s[4:19], s[0:1], 0\ns_load_dwordx16 s[20:35], s[0:1], 64\ns_load_dwordx2 s[36:37], s[0:1], 136')
        e('s_cmp_ge_u32 s2, 256\ns_cbranch_scc1 L_exit')
        e('v_lshrrev_b32 v%d, 6, v0\nv_and_b32 v%d, 63, v0' % (T, vL))
        e('s_lshr_b32 s%d, s2, 3\ns_and_b32 s%d, s2, 1' % (sT0, sT1))
        e('v_readfirstlane_b32 s%d, v%d' % (sW, T))
        e('s_cmp_ge_u32 s%d, 28\ns_cbranch_scc1 %s' % (sT0, 'L_helper' if p['helper'] else 'L_exit'))
        e('s_lshl_b32 s%d, s%d, 2' % (sT1, sT1))
        e('s_and_b32 s%d, s2, 6\ns_lshl_b32 s%d, s%d, 2' % (sR, sR, sR))
        e('s_and_b32 s%d, s%d, 7\ns_add_u32 s%d, s%d, s%d' % (sT2, sT0, sR, sR, sT2))
        e('s_lshr_b32 s%d, s%d, 3\ns_add_u32 s%d, s%d, s%d' % (sS, sT0, sS, sS, sT1))
        e('s_cmp_ge_u32 s%d, 24\ns_cselect_b32 s%d, 3, s%d\ns_cselect_b32 s%d, s%d, 0' % (sT0, sS, sS, sT1, sT1))
        e('s_add_u32 s%d, s%d, s%d' % (sR, sR, sT1))
        e('v_lshrrev_b32 v%d, 3, v%d' % (T, vL))
        e('v_lshrrev_b32 v%d, 4, v%d' % (T + 1, vL))
        e('v_and_b32 v%d, 7, v%d' % (T + 2, vL))
        e('v_mul_u32_u24 v%d, 896, v%d' % (T + 3, T))
        e('v_xor_b32 v%d, v%d, v%d' % (T + 4, T + 2, T + 1))
        e('v_lshl_add_u32 v%d, v%d, 4, v%d' % (vE, T + 4, T + 3))
        e('v_xor_b32 v%d, 64, v%d' % (vO, vE))
        e('v_add_u32 v%d, 6144, v%d\nv_add_u32 v%d, 5120, v%d\nv_add_u32 v%d, 5120, v%d' % (vOx, vO, vB2, vE, vB3, vO))
        e('s_mul_i32 s%d, s%d, %d' % (sRING, sW, RING))
        e('s_lshl_b32 s%d, s%d, 2\ns_add_u32 s%d, s%d, s%d\ns_mul_i32 s%d, s%d, %d' % (sXO, sR, sXO, sXO, sW, sXO, sXO, 16 * 896))
        e('s_lshl_b32 s%d, s%d, 2\ns_add_u32 s%d, s%d, s%d' % (sT2, sS, sT2, sT2, sW))
        e('s_mul_i32 s%d, s%d, %d' % (sBO, sT2, 16 * 896))
        e('s_lshl_b32 s%d, s%d, 11\ns_add_u32 s%d, s%d, %d' % (sPUB, sW, sPUB, sPUB, XH))
        if p['rot']:
            e('s_lshl_b32 s%d, s%d, 1\ns_add_u32 s%d, s%d, s%d\ns_mul_i32 s%d, s%d, 37\ns_lshr_b32 s%d, s%d, 8' % (sROT, sS, sROT, sROT, sR, sT0, sROT, sT0, sT0))
            e('s_mul_i32 s%d, s%d, 7\ns_sub_u32 s%d, s%d, s%d' % (sT0, sT0, sROT, sROT, sT0))
        else: e('s_mov_b32 s%d, 0' % sROT)
        e('s_lshl_b32 s%d, s%d, 7' % (sTAB[0], sROT))
        def tab(i): e('s_add_u32 s%d, s%d, 128\ns_cmp_eq_u32 s%d, 896\ns_cselect_b32 s%d, 0, s%d' % (sTAB[i], sTAB[i - 1], sTAB[i], sTAB[i], sTAB[i]))
        for i in range(1, 5): tab(i)
        e('s_mov_b32 s%d, %d\ns_mov_b32 s%d, 0x20000' % (SX + 2, 2048 * 896, SX + 3))
        e('s_mov_b32 s%d, %d\ns_mov_b32 s%d, 0x20000' % (SBR + 2, 448 * 896, SBR + 3))
        e('s_mov_b32 s%d, %d\ns_mov_b32 s%d, 0x20000' % (SBI + 2, 448 * 896 + 1024, SBI + 3))
        e('s_mov_b64 %s, s[4:5]\ns_mov_b64 %s, s[10:11]' % (sr(SX, 2), sr(SBR, 2)))
        e('s_sub_u32 s%d, s12, 1024\ns_subb_u32 s%d, s13, 0' % (SBI, SBI + 1))
        xd = {}
        sXB = sPUB
        def xfill(cb):
            o = [I('s_add_u32 m0, s%d, %d' % (sXB, cb * 8192)), I('s_add_u32 s%d, s%d, s%d' % (sT0, sXO, sTAB[cb]))]
            xd[cb] = [I('buffer_load_dwordx4 v%d, %s, s%d offen lds' % (vE, sr(SX, 4), sT0)),
                      I('buffer_load_dwordx4 v%d, %s, s%d offen offset:1024 lds' % (vOx, sr(SX, 4), sT0))]
            return o + xd[cb]
        j, hi = T2, T2 + 1
        self.seq += xfill(0) + self.fill(0) + xfill(1)
        tab(5); tab(6)
        if p['diag']: e('s_mov_b32 s99, 0')
        e('v_and_b32 v%d, 31, v%d\nv_lshrrev_b32 v%d, 5, v%d' % (j, vL, hi, vL))
        e('v_lshrrev_b32 v%d, 4, v%d\nv_and_b32 v%d, 7, v%d' % (T + 3, j, T + 4, j))
        e('v_lshl_add_u32 v%d, v%d, 3, v%d' % (T + 3, T + 3, T + 4))
        e('s_lshl_b32 s%d, s%d, 4' % (sT0, sT2))
        e('v_add_lshl_u32 v%d, v%d, s%d, 1' % (T + 3, T + 3, sT0))
        e('v_mov_b32 v%d, 0' % (T + 4))
        e('global_load_ushort v%d, v%d, s[18:19]' % (GA + 16, T + 3))
        e('global_load_ushort v%d, v%d, s[6:7]' % (GA + 17, T + 3))
        e('global_load_ushort v%d, v%d, s[8:9]' % (GA + 18, T + 3))
        e('global_load_dword v%d, v%d, s[36:37] sc1' % (GA + 19, T + 4))
        pa, pb, pc = GA, GA + 2, GA + 3
        e('v_lshlrev_b32 v%d, 4, v%d' % (vL16, vL))
        e('s_lshl_b32 s%d, s%d, 7\nv_add_u32 v%d, s%d, v%d\nv_subrev_u32 v%d, 896, v%d\nv_min_u32 v%d, v%d, v%d' % (sT0, sW, pb, sT0, vL16, pc, pb, pb, pb, pc))
        e('s_movk_i32 s%d, 127' % sT0)
        e('s_cmp_eq_u32 s%d, 2\ns_cselect_b32 s%d, 511, s83\ns_cselect_b32 s%d, 9, 7\ns_cselect_b64 s[30:31], s[26:27], s[30:31]' % (sW, sT0, sT3))
        e('s_lshl_b32 s%d, s%d, s%d\nv_and_b32 v%d, s%d, v%d\nv_add_u32 v%d, s%d, v%d' % (sT3, sS, sT3, pc, sT0, vL16, pc, sT3, pc))
        e('s_cmp_lt_u32 s%d, 2\ns_cselect_b64 vcc, -1, 0\ns_cselect_b64 s[30:31], s[32:33], s[30:31]' % sW)
        e('v_cndmask_b32 v%d, v%d, v%d, vcc' % (pb, pc, pb))
        e('s_cmp_eq_u32 s%d, 3\ns_cselect_b64 vcc, 0xff, 0' % sW)
        e('v_mov_b32 v%d, s30\nv_mov_b32 v%d, s31\nv_mov_b32 v%d, s20\nv_mov_b32 v%d, s21' % (pa, pa + 1, pa + 4, pa + 5))
        e('v_cndmask_b32 v%d, v%d, v%d, vcc\nv_cndmask_b32 v%d, v%d, v%d, vcc' % (pa, pa, pa + 4, pa + 1, pa + 1, pa + 5))
        e('v_add_co_u32 v%d, vcc, v%d, v%d\ns_lshl_b32 s%d, s%d, 10\ns_add_u32 m0, s%d, %d' % (pa, pa, pb, sT0, sW, sT0, PARAM))
        e('v_addc_co_u32 v%d, vcc, 0, v%d, vcc' % (pa + 1, pa + 1))
        pdma = e('global_load_lds_dwordx4 %s, off' % vr(pa, 2))
        GW = [ACC(0, 1) + 4 * n if n < 4 else ACC(1, 1) + 4 * (n - 4) for n in range(7)]
        self.seq += self.stamp()
        self.srd(SW1, 24, 448 * 3584); self.srd(SW2, 28, 1792 * 896); self.srd(SOUT, 34, 2048 * 1792)
        e('s_cmp_ge_u32 s%d, 2\ns_cselect_b32 s%d, s16, s14\ns_cselect_b32 s%d, s17, s15' % (sW, SC, SC + 1))
        e('s_mov_b32 s%d, %d\ns_mov_b32 s%d, 0x20000' % (SC + 2, 448 * 896, SC + 3))
        e('s_lshl_b32 s%d, s%d, 13\ns_add_u32 s%d, s%d, %d' % (sT0, sT2, sT0, sT0, WS_ST + p['wsoff']))
        e('s_add_u32 s%d, s36, s%d\ns_addc_u32 s%d, s37, 0\ns_mov_b32 s%d, 8192\ns_mov_b32 s%d, 0x20000' % (SST, sT0, SST + 1, SST + 2, SST + 3))
        e('s_mul_i32 s%d, s%d, 401408\ns_add_u32 s%d, s%d, %d' % (sT0, sR, sT0, sT0, WS_IN + p['wsoff']))
        e('s_add_u32 s%d, s36, s%d\ns_addc_u32 s%d, s37, 0\ns_mov_b32 s%d, 401408\ns_mov_b32 s%d, 0x20000' % (SIN, sT0, SIN + 1, SIN + 2, SIN + 3))
        e('s_lshl_b32 s%d, s%d, 7' % (sW1O, sT2))
        e('s_lshl_b32 s%d, s%d, 3\ns_add_u32 s%d, s%d, s%d\ns_mul_i32 s%d, s%d, %d' % (sW2B, sS, sW2B, sW2B, sW, sW2B, sW2B, 32 * 896))
        e('s_and_b32 s%d, s%d, 1\ns_mul_i32 s%d, s%d, %d\ns_lshl_b32 s%d, s%d, 7\ns_add_u32 s%d, s%d, s%d' % (sT3, sW, sCB, sT3, 32 * 896, sT0, sS, sCB, sCB, sT0))
        e('s_mov_b32 s%d, s%d' % (sG, sS))
        e('s_mov_b32 s%d, 0x3f80\ns_mov_b32 s%d, 0x3f800000\ns_mov_b32 s%d, %d' % (sLO, sHI, sSPIN, p['spin']))
        tau, sw, rr, t0, t1, t2 = T2 + 2, T2 + 3, T2 + 4, T2 + 5, T2 + 6, T2 + 7
        e('v_add_u32 v%d, 12288, v%d\nv_add_u32 v%d, 18432, v%d' % (vC2, vE, vC3, vO))
        e('v_and_b32 v%d, 3, v%d\nv_and_b32 v%d, 2, v%d\nv_lshlrev_b32 v%d, 1, v%d' % (t0, T, t1, T, t1, t1))
        e('v_xor_b32 v%d, v%d, v%d\nv_xor_b32 v%d, v%d, v%d\nv_lshlrev_b32 v%d, 4, v%d' % (t0, t0, t1, t0, t0, T + 2, t0, t0))
        e('v_mul_u32_u24 v%d, 3584, v%d\nv_add_u32 v%d, v%d, v%d' % (t1, T, vW1, t1, t0))
        e('v_mul_u32_u24 v%d, 896, v%d\nv_add_u32 v%d, v%d, v%d' % (t1, T, vW2, t1, t0))
        for q in range(1, 4):
            e('v_add_u32 v%d, %d, v%d\nv_add_u32 v%d, %d, v%d' % (vW1 + q, q * (28672 - 1024), vW1, vW2 + q, q * 6144, vW2))
        e('v_bfe_u32 v%d, v%d, 2, 1\nv_lshrrev_b32 v%d, 3, v%d\nv_and_b32 v%d, 3, v%d' % (t0, j, t1, j, tau, j))
        e('v_lshl_add_u32 v%d, v%d, 4, v%d\nv_lshl_add_u32 v%d, v%d, 2, v%d' % (tau, t0, tau, tau, t1, tau))
        e('v_bfe_u32 v%d, v%d, 1, 3' % (sw, tau))
        e('v_xor_b32 v%d, v%d, v%d\nv_lshlrev_b32 v%d, 4, v%d\nv_lshl_add_u32 v%d, v%d, 7, v%d' % (t0, hi, sw, t0, t0, t0, tau, t0))
        e('v_add_u32 v%d, %d, v%d' % (aX, XH, t0))
        for k in range(1, 4): e('v_xor_b32 v%d, %d, v%d' % (aX + k, k << 5, aX))
        e('v_bfe_u32 v%d, v%d, 1, 3\nv_xor_b32 v%d, v%d, v%d\nv_lshlrev_b32 v%d, 4, v%d' % (t0, j, t0, hi, t0, t0, t0))
        e('v_lshl_add_u32 v%d, v%d, 7, v%d\nv_add_u32 v%d, s%d, v%d' % (t0, j, t0, aB, sRING, t0))
        for k in range(1, 4): e('v_xor_b32 v%d, %d, v%d' % (aB + k, k << 5, aB))
        e('v_lshlrev_b32 v%d, 4, v%d\nv_lshl_add_u32 v%d, v%d, 7, v%d' % (t0, sw, t0, tau, t0))
        e('v_mul_u32_u24 v%d, %d, v%d\ns_mul_i32 s%d, s%d, %d' % (t1, 2 * RING, hi, sT0, sT3, RING))
        e('v_add3_u32 v%d, v%d, v%d, s%d' % (aC, t0, t1, sT0))
        for m in range(1, 8): e('v_xor_b32 v%d, %d, v%d' % (aC + m, m << 4, aC))
        e('v_bfe_u32 v%d, v%d, 2, 2' % (rr, vL))
        e('v_and_b32 v%d, 2, v%d\nv_lshlrev_b32 v%d, 1, v%d\nv_xor_b32 v%d, v%d, v%d' % (t0, rr, t0, t0, t0, t0, rr))
        e('v_and_b32 v%d, 1, v%d\nv_bfe_u32 v%d, v%d, 4, 1\nv_lshl_add_u32 v%d, v%d, 1, v%d' % (t1, vL, t2, vL, t1, t1, t2))
        e('v_xor_b32 v%d, v%d, v%d\nv_lshlrev_b32 v%d, 4, v%d\nv_lshl_add_u32 v%d, v%d, 7, v%d' % (t0, t0, t1, t0, t0, t0, rr, t0))
        e('v_bfe_u32 v%d, v%d, 1, 1\nv_lshl_add_u32 v%d, v%d, 3, v%d' % (t1, vL, t0, t1, t0))
        e('v_lshl_add_u32 v%d, v%d, 10, v%d' % (t1, hi, t0))
        e('v_add_u32 v%d, s%d, v%d\nv_xor_b32 v%d, 64, v%d' % (aW1, sRING, t1, aW1 + 1, aW1))
        e('s_lshr_b32 s%d, s%d, 1\ns_lshl_b32 s%d, s%d, 6' % (sT1, sW, sT0, sT1))
        e('v_xor_b32 v%d, s%d, v%d\nv_add_u32 v%d, %d, v%d' % (t1, sT0, t1, aHI, HIMG, t1))
        e('s_lshl_b32 s%d, s%d, 6' % (sT0, sT3))
        e('v_lshl_add_u32 v%d, v%d, 11, v%d\nv_xor_b32 v%d, s%d, v%d\nv_add_u32 v%d, %d, v%d' % (t1, hi, t0, aW2, sT0, t1, aW2 + 1, 2 * RING, aW2))
        e('s_lshl_b32 s%d, s%d, 13\ns_add_u32 s%d, s%d, %d\nv_add_u32 v%d, s%d, v%d' % (sT0, sW, sT0, sT0, HF, aHW, sT0, vL16))
        e('s_lshl_b32 s%d, s%d, 10\ns_add_u32 s%d, s%d, %d\nv_add_u32 v%d, s%d, v%d' % (sT0, sT1, sT0, sT0, HF, aHR, sT0, vL16))
        e('v_and_b32 v%d, 3, v%d\nv_and_b32 v%d, 2, v%d\nv_lshlrev_b32 v%d, 1, v%d\nv_xor_b32 v%d, v%d, v%d' % (t0, j, t1, j, t1, t1, t0, t0, t1))
        e('v_lshlrev_b32 v%d, 1, v%d\nv_xor_b32 v%d, v%d, v%d\nv_lshlrev_b32 v%d, 4, v%d\nv_lshl_add_u32 v%d, v%d, 7, v%d' % (t1, hi, t0, t0, t1, t0, t0, t0, j, t0))
        e('s_lshl_b32 s%d, s%d, 12\ns_add_u32 s%d, s%d, %d\nv_add_u32 v%d, s%d, v%d' % (sT0, sW, sT0, sT0, HIMG, aHS, sT0, t0))
        e('s_sub_u32 s%d, 32, s%d\nv_add_u32 v%d, s%d, v%d\nv_lshlrev_b32 v%d, 3, v%d' % (sT0, sR, t0, sT0, hi, t1, j))
        e('v_lshl_add_u32 v%d, v%d, 8, v%d\nv_add_u32 v%d, 4096, v%d' % (vG0, t0, t1, vG1, vG0))
        e('s_sub_u32 s%d, 31, s%d\ns_lshl_b32 s%d, s%d, 8\nv_add_u32 v%d, s%d, v%d\nv_lshl_add_u32 v%d, v%d, 16, v%d' % (sT0, sR, sT0, sT0, t1, sT0, t1, vPB, hi, t1))
        e('v_lshl_add_u32 v%d, v%d, 5, v%d' % (t0, hi, tau))
        e('s_lshl_b32 s%d, s%d, 2\ns_add_u32 s%d, s%d, %d\nv_lshl_add_u32 v%d, v%d, 4, s%d' % (sT0, sW, sT0, sT0, ZBUF, aZW, t0, sT0))
        e('v_lshlrev_b32 v%d, 4, v%d\nv_add_u32 v%d, %d, v%d' % (t1, tau, aZR, ZBUF, t1))
        e('s_lshl_b32 s%d, s%d, 8\ns_add_u32 s%d, s%d, %d\nv_lshl_add_u32 v%d, v%d, 2, s%d\nv_lshl_add_u32 v%d, v%d, 6, s%d' % (sT0, sW, sT0, sT0, G2BUF, aGW, t0, sT0, aGR, hi, sT0))
        e('s_sub_u32 s%d, s%d, s%d\ns_cselect_b32 s%d, 7, 0\ns_add_u32 s%d, s%d, s%d' % (sT0, sS, sROT, sLO, sT0, sT0, sLO))
        e('s_lshl_b32 s%d, s%d, 1\ns_add_u32 s%d, s%d, s%d\ns_lshl_b32 s%d, s%d, 12\ns_add_u32 s%d, s%d, %d' % (sT0, sT0, sT0, sT0, sT1, sT0, sT0, sT0, sT0, XH))
        e('s_lshl_b32 s%d, s%d, 2\nv_lshl_add_u32 v%d, v%d, 1, s%d\nv_xor_b32 v%d, v%d, v%d\nv_lshlrev_b32 v%d, 4, v%d' % (sLO, sT3, t0, hi, sLO, t0, t0, sw, t0, t0))
        e('v_lshl_add_u32 v%d, v%d, 7, v%d\nv_add_u32 v%d, s%d, v%d' % (t0, tau, t0, aXE, sT0, t0))
        e('s_lshl_b32 s%d, s%d, 6\ns_add_u32 s%d, s%d, %d\nv_lshl_add_u32 v%d, v%d, 5, s%d' % (sT0, sT3, sT0, sT0, PARAM + 3072, aDE, hi, sT0))
        e('s_lshl_b32 s%d, s%d, 1\ns_add_u32 s%d, s%d, s%d\ns_mul_i32 s%d, s%d, %d' % (sT0, sR, sT0, sT0, sT1, sT0, sT0, 32 * 1792))
        e('s_lshl_b32 s%d, s%d, 1\ns_add_u32 s%d, s%d, s%d\ns_lshl_b32 s%d, s%d, 7\ns_add_u32 s%d, s%d, s%d' % (sLO, sS, sLO, sLO, sT3, sLO, sLO, sT0, sT0, sLO))
        if p['outlds']:
            e('v_mul_u32_u24 v%d, 1792, v%d\nv_lshl_add_u32 v%d, v%d, 4, v%d\nv_add_u32 v%d, s%d, v%d' % (t0, T, t0, T + 2, t0, vOUT, sT0, t0))
        else:
            e('v_mul_u32_u24 v%d, 1792, v%d\nv_lshl_add_u32 v%d, v%d, 6, v%d\nv_add_u32 v%d, s%d, v%d' % (t0, tau, t0, hi, t0, vOUT, sT0, t0))
        aGWR, aB1R = T2 + 9, T2 + 10
        e('s_mul_i32 s%d, s%d, 224\ns_add_u32 s%d, s%d, s%d\ns_add_u32 s%d, s%d, %d\nv_lshl_add_u32 v%d, v%d, 4, s%d' % (sT0, sW, sT0, sT0, sTAB[0], sT0, sT0, PARAM, aGWR, hi, sT0))
        e('s_lshl_b32 s%d, s%d, 7\ns_add_u32 s%d, s%d, %d\nv_lshl_add_u32 v%d, v%d, 5, s%d' % (sT0, sW, sT0, sT0, PARAM + 2048, aB1R, hi, sT0))
        e('s_mov_b32 s%d, 0x3f80' % sLO)
        c0 = -2.0 * math.sqrt(2.0 / math.pi) * math.log2(math.e)
        e('v_mov_b32 v%d, 0x%08x\nv_mov_b32 v%d, 0x%08x' % (vGC, f2u(c0 * 0.044715), vGC + 1, f2u(c0)))
        self.seq += self.stamp()
        self.seq += self.fill(1) + xfill(2) + self.fill(2)
        keep = self.seq; self.seq = []
        LD, LR, LI = GA + 16, GA + 17, GA + 18
        e('v_lshlrev_b32 v%d, 16, v%d\nv_lshlrev_b32 v%d, 16, v%d\nv_lshlrev_b32 v%d, 16, v%d' % (LD, LD, LR, LR, LI, LI))
        e('v_readfirstlane_b32 s%d, v%d' % (sNONCE, GA + 19))
        e('v_mul_f32 v%d, 0x%08x, v%d\nv_exp_f32 v%d, v%d' % (LD, f2u(math.log2(math.e)), LD, LD, LD))
        e('s_add_u32 s%d, s%d, 1' % (sNONCE, sNONCE))
        e('v_cvt_pk_bf16_f32 v%d, v%d, v%d\nv_and_b32 v%d, 0xffff0000, v%d' % (LD, LD, LD, LD, LD))
        e('v_mul_f32 v%d, v%d, v%d\nv_mul_f32 v%d, v%d, v%d' % (t0, LD, LR, t1, LD, LI))
        e('v_mul_f32 v%d, 0x%08x, v%d\nv_mul_f32 v%d, 0.15915494, v%d' % (t0, f2u(math.log2(math.e)), t0, t1, t1))
        e('v_exp_f32 v%d, v%d\nv_rndne_f32 v%d, v%d\nv_sub_f32 v%d, v%d, v%d' % (t0, t0, t2, t1, t1, t1, t2))
        e('v_cos_f32 v%d, v%d\nv_sin_f32 v%d, v%d' % (t2, t1, t1, t1))
        e('v_mul_f32 v%d, v%d, v%d\nv_mul_f32 v%d, v%d, v%d' % (cA, t0, t2, t1, t0, t1))
        sg = T2 + 8
        e('v_lshlrev_b32 v%d, 28, v%d\nv_and_b32 v%d, 0x80000000, v%d\nv_xor_b32 v%d, v%d, v%d' % (sg, j, sg, sg, cSB, sg, t1))
        e('v_mul_f32 v%d, v%d, v%d\nv_fmac_f32 v%d, v%d, v%d\nv_rcp_f32 v%d, v%d' % (t0, LR, LR, t0, LI, LI, t0, t0))
        e('v_add_f32 v%d, -1.0, v%d' % (t2, cA))
        e('v_mul_f32 v%d, v%d, v%d\nv_fmac_f32 v%d, v%d, v%d' % (cCO, t2, LR, cCO, t1, LI))
        e('v_mul_f32 v%d, v%d, v%d\nv_fma_f32 v%d, -v%d, v%d, v%d' % (cCO + 1, t2, LI, cCO + 1, t1, LR, cCO + 1))
        e('v_mul_f32 v%d, v%d, v%d\nv_mul_f32 v%d, v%d, v%d\nv_xor_b32 v%d, v%d, v%d' % (cCO, cCO, t0, cCO + 1, cCO + 1, t0, cCO, sg, cCO))
        def sq(d, s):
            e('v_mul_f32 v%d, v%d, v%d\nv_add_f32 v%d, v%d, v%d' % (t0, s + 1, s + 1, t2, s, s))
            e('v_fma_f32 v%d, v%d, v%d, -v%d\nv_mul_f32 v%d, v%d, v%d' % (d, s, s, t0, d + 1, t2, s + 1))
        sq(c16, cA); sq(c32, c16); sq(c16, c32); sq(c64, c16);
        e('v_mov_b32 v%d, v%d\nv_mov_b32 v%d, v%d' % (c16, c64, c16 + 1, c64 + 1))
        sq(c32, c16); sq(c64, c32); sq(c128, c64)
        e('v_cmp_eq_u32 vcc, 0, v%d' % hi)
        e('v_cndmask_b32 v%d, v%d, 1.0, vcc\nv_cndmask_b32 v%d, v%d, 0, vcc' % (cMU, c16, cMU + 1, c16 + 1))
        e('s_add_u32 s%d, s%d, 1\nv_sub_u32 v%d, s%d, v%d\nv_lshrrev_b32 v%d, 1, v%d\nv_mul_lo_u32 v%d, v%d, s%d' % (sT1, sR, t0, sT1, hi, t0, t0, vEXP, t0, sNONCE))
        VS = [(4, x) for x in self.seq]; self.seq = []
        for n in range(4): e('ds_read_b128 %s, v%d offset:%d' % (vr(GA + 4 * n, 4), aB1R, (n >> 1) * 64 + (n & 1) * 16))
        for n in range(7): e('ds_read_b128 %s, v%d offset:%d' % (vr(GW[n], 4), aGWR, n * 32))
        for b in range(2):
            for k in range(8):
                e('v_lshlrev_b32 v%d, 16, v%d\nv_and_b32 v%d, 0xffff0000, v%d' % (ACC(b, 0) + 2 * k, GA + 8 * b + k, ACC(b, 0) + 2 * k + 1, GA + 8 * b + k))
        VS += [(30, x) for x in self.seq]; self.seq = keep

        def sreads(cb):
            o = []
            for kq in range(4):
                o.append(I('ds_read_b128 %s, v%d offset:%d' % (vr(FR + (cb & 1) * 16 + 4 * kq, 4), aB + kq, (cb % 6) * 4096)))
            for kq in range(4):
                for t in range(2):
                    o.append(I('ds_read_b128 %s, v%d offset:%d' % (ar(XA(4 * cb + kq, t), 4), aX + kq, cb * 8192 + t * 4096)))
            return o
        def wreads(kk):
            F = 7 + (kk >> 1); d = self.fills[F][2 * (kk & 1):2 * (kk & 1) + 2]
            base = FR + (kk % 3) * 8; off = (F % 6) * 4096 + (kk & 1) * 2048
            return [I('ds_read_b64_tr_b16 %s, v%d offset:%d' % (vr(base + 4 * b + 2 * h, 2), aW1 + b, off + 512 * h), deps=d)
                    for b in range(2) for h in range(2)]
        e('s_barrier', deps=xd[0] + self.fills[0])
        self.seq += self.stamp()
        rd = {0: sreads(0)}
        self.seq += rd[0]
        mf = []; pre = {}; post = {}
        for cb in range(7):
            for kq in range(4):
                for t in range(2):
                    c = '0' if (cb == 0 and kq == 0) else vr(U + 16 * t, 16)
                    mf.append(I('v_mfma_f32_32x32x16_bf16 %s, %s, %s, %s' % (vr(U + 16 * t, 16), ar(XA(4 * cb + kq, t), 4), vr(FR + (cb & 1) * 16 + 4 * kq, 4), c)))
            g0 = 8 * cb
            for k in range(8): post[g0 + k] = []
            if cb < 6:
                rd[cb + 1] = sreads(cb + 1)
                post[g0] = [I('s_barrier', deps=xd[cb + 1] + self.fills[cb + 1] + ([pdma] if cb == 0 else []))] + rd[cb + 1][0:2]
                for k in range(5): post[g0 + 1 + k] = rd[cb + 1][2 + 2 * k:4 + 2 * k]
            if cb + 3 <= 6: groups = [xfill(cb + 3), self.fill(cb + 3)]
            else: groups = [self.fill(7 + 2 * (cb - 4)), self.fill(8 + 2 * (cb - 4))]
            k = g0 + (1 if cb + 3 <= 6 else 0)
            for fl in groups:
                hd = []
                for x in fl:
                    if x.kind == 'dma':
                        x.deps += rd[cb][:4]
                        post[k] = hd + [x] + post[k] if k == g0 + 1 else post[k] + hd + [x]
                        hd = []; k += 1
                    else: hd.append(x)
        left = self.weave(mf, pre, post, VS, budget=5)
        assert not left
        k = [i for i, x in enumerate(self.seq) if x is mf[-3]][0]
        keep = self.seq[k + 1:]; self.seq = self.seq[:k + 1]
        e('s_cmp_eq_u32 s%d, 1\ns_cbranch_scc1 L_z1\ns_cmp_eq_u32 s%d, 2\ns_cbranch_scc1 L_z2\ns_cmp_eq_u32 s%d, 3\ns_cbranch_scc1 L_z3' % (sW, sW, sW))
        e('L_z0:', tag='zbeg')
        self.seq += keep
        self.seq += self.stamp()

        wr = {0: wreads(0), 1: wreads(1)}
        hA, hB = T2, T2 + 2
        sc1 = []
        for r in range(1, 16):
            prev = [U + 16 * t if r == 1 else (hA, hB)[t] + ((r - 1) & 1) for t in range(2)]
            cur = [(hA, hB)[t] + (r & 1) for t in range(2)]
            for t in range(2): sc1.append(I('v_fma_f32 v%d, v%d, v%d, v%d' % (cur[t], cA, prev[t], U + 16 * t + r)))
            for t in range(2): sc1.append(I('v_fmac_f32_dpp v%d, v%d, -v%d %s' % (cur[t], prev[t], cSB, DPP)))
        eA, eB = hA + 1, hB + 1
        mf = []
        for n in range(7):
            for t in range(2):
                m = I('v_mfma_f32_32x32x16_bf16 %s, %s, %s, %s' % (ar(ZA + 16 * t, 16), vr(GW[n], 4), ar(XA(n, t), 4), '0' if n == 0 else ar(ZA + 16 * t, 16)))
                m.alt = ['v_mfma_f32_32x32x16_bf16 %s, %s, %s, %s' % (ar(ZA + 16 * t, 16), vr(GW[n], 4), ar(XA(7 * w + n, t), 4), '0' if n == 0 else ar(ZA + 16 * t, 16)) for w in range(4)]
                mf.append(m)
        left = self.weave(mf, {}, {0: wr[0], 9: wr[1][:2], 11: wr[1][2:],
                                   4: [I('ds_read_b128 %s, v%d' % (vr(XRAW, 4), aXE)), I('v_xor_b32 v%d, 16, v%d' % (aXE, aXE))],
                                   6: [I('ds_read_b128 %s, v%d' % (vr(XRAW + 4, 4), aXE))]}, [(1, x) for x in sc1], budget=5)
        e('L_zend:', tag='zend')

        V = [(0, x) for _, x in left]
        def add(k, lst): V.extend((4 * k, x) for x in lst)
        ta, tb = T2 + 4, T2 + 5
        seq = [I('v_mul_f32_dpp v%d, v%d, v%d %s' % (ta, eA, cCO + 1, DPP)), I('v_mul_f32_dpp v%d, v%d, v%d %s' % (tb, eB, cCO + 1, DPP)),
               I('v_fmac_f32 v%d, v%d, v%d' % (ta, cCO, eA)), I('v_fmac_f32 v%d, v%d, v%d' % (tb, cCO, eB)),
               I('v_accvgpr_read_b32 v%d, a%d' % (T, ZA)), I('v_accvgpr_read_b32 v%d, a%d' % (T + 1, ZA + 16)),
               I('v_permlane32_swap_b32 v%d, v%d' % (ta, tb)),
               I('v_cmp_gt_u32 vcc, 32, v%d' % vL), I('v_mov_b32 v%d, 0' % vZ0)]
        seq += self.cmul(tb, ta, c16)
        seq += [I('v_cndmask_b32 v%d, v%d, v%d, vcc' % (T, T + 1, T)), I('v_mov_b32 v%d, v%d' % (vT0, tb)), I('v_mov_b32 v%d, v%d' % (vZ1, ta))]
        zw = I('ds_write_b32 v%d, v%d' % (aZW, T))
        pe = T2 + 7 if (T2 + 7) % 2 == 0 else T2 + 6
        seq += [zw, I('v_permlane32_swap_b32 v%d, v%d' % (vT0, tb)), I('v_mov_b32 v%d, s%d' % (pe + 1, sNONCE)),
                I('v_mov_b32 v%d, v%d' % (pe, tb)), I('v_permlane32_swap_b32 v%d, v%d' % (vZ0, vZ1))]
        seq += self.cmul(pe, vT0, c32)
        if p['nostate'] in (0, 2): seq += [I('buffer_store_dwordx2 %s, v%d, %s, 0 offen %s' % (vr(pe, 2), vPB, sr(SST, 4), p['stflag']))]
        add(0, seq)
        zr = GA
        seq = [I('s_barrier', deps=[zw]), I('ds_read_b128 %s, v%d' % (vr(zr, 4), aZR)), I('ds_read_b128 %s, v%d offset:512' % (vr(zr + 4, 4), aZR))]
        scal = []
        for t in range(2):
            for r in range(0, 16, 2):
                a, b = U + 16 * t + r, U + 16 * t + r + 1
                scal += [I('v_mul_f32_dpp v%d, v%d, v%d %s' % (T, a, cCO + 1, DPP)), I('v_mul_f32_dpp v%d, v%d, v%d %s' % (T + 1, b, cCO + 1, DPP)),
                         I('v_fma_f32 v%d, v%d, v%d, v%d' % (a, cCO, a, T)), I('v_fma_f32 v%d, v%d, v%d, v%d' % (b, cCO, b, T + 1))]
        seq += scal[:16]
        g = [zr + 8, zr + 9]; gm = [zr + 10, zr + 11]
        gs = []
        for st in range(12):
            for t in range(2):
                z = zr + 4 * t
                gs.append([
                    'v_add_f32 v%d, v%d, v%d' % (z, z, z + 1), 'v_add_f32 v%d, v%d, v%d' % (z + 2, z + 2, z + 3),
                    'v_add_f32 v%d, v%d, v%d' % (z, z, z + 2), 'v_cvt_pk_bf16_f32 v%d, v%d, v%d' % (z, z, z),
                    'v_and_b32 v%d, 0xffff0000, v%d' % (z, z), 'v_mul_f32 v%d, 0x%08x, v%d' % (z, f2u(-math.log2(math.e)), z),
                    'v_exp_f32 v%d, v%d' % (z, z), 'v_add_f32 v%d, 1.0, v%d' % (z, z), 'v_rcp_f32 v%d, v%d' % (z, z),
                    'v_cvt_pk_bf16_f32 v%d, v%d, v%d' % (z, z, z), 'v_and_b32 v%d, 0xffff0000, v%d' % (g[t], z),
                    'v_sub_f32 v%d, 1.0, v%d' % (z, g[t])][st])
        for t in range(2): gs.append('v_cvt_pk_bf16_f32 v%d, v%d, v%d' % (zr + 4 * t, zr + 4 * t, zr + 4 * t))
        for t in range(2): gs.append('v_and_b32 v%d, 0xffff0000, v%d' % (gm[t], zr + 4 * t))
        for t in range(2): gs.append('v_max_f32 v%d, 0x%08x, v%d' % (zr + 4 * t, f2u(1e-30), gm[t]))
        for t in range(2): gs.append('v_rcp_f32 v%d, v%d' % (vIG + t, zr + 4 * t))
        gs.append('v_cndmask_b32 v%d, v%d, v%d, vcc' % (zr, g[1], g[0]))
        gs.append(['s_cmp_ge_u32 s%d, 2' % sW, 's_cselect_b64 vcc, -1, 0'])
        gs.append('v_add_f32 v%d, v%d, v%d' % (zr, zr, zr))
        gs.append('v_cndmask_b32 v%d, v%d, v%d, vcc' % (vG, g[0], g[1]))
        gs.append('v_cndmask_b32 v%d, v%d, v%d, vcc' % (vGM, gm[0], gm[1]))
        seq += [[I(y) for y in x] if isinstance(x, list) else I(x) for x in gs]
        gw_ = I('ds_write_b32 v%d, v%d' % (aGW, zr))
        seq += [gw_] + scal[16:]
        add(p['bz_k'], seq)
        seq = []
        for k in range(4):
            seq += [I('s_bfe_u32 s%d, s%d, 0x%x' % (sTG[k], sNONCE, 0x10000 | (2 * k))), I('s_bfe_u32 s%d, s%d, 0x%x' % (sT3, sNONCE, 0x10000 | (2 * k + 1))),
                    I('s_lshl_b32 s%d, s%d, 16' % (sT3, sT3)), I('s_or_b32 s%d, s%d, s%d' % (sTG[k], sTG[k], sT3))]
        seq += [I('s_lshl_b32 s%d, s%d, 13' % (sPUB, sS)), I('s_lshl_b32 s%d, s%d, 11' % (sT1, sW)), I('s_add_u32 s%d, s%d, s%d' % (sPUB, sPUB, sT1)),
                I('s_mov_b32 s%d, s%d' % (sT2, sS))]
        add(p['bz_k'], seq)
        def gloads():
            return [I('buffer_load_dwordx2 %s, v%d, %s, 0 offen offset:%d %s' % (vr(GA + 2 * q, 2), vG0 if q < 8 else vG1, sr(SST, 4), (q & 7) * 512, p['ldflag'])) for q in range(16)]
        def gcheck():
            o = [I('v_add3_u32 v%d, v%d, v%d, v%d' % (T, GA + 1, GA + 3, GA + 5)), I('v_add3_u32 v%d, v%d, v%d, v%d' % (T + 1, GA + 7, GA + 9, GA + 11))]
            for k in range(2):
                o += [I('v_add3_u32 v%d, v%d, v%d, v%d' % (T, T, GA + 13 + 8 * k, GA + 15 + 8 * k)), I('v_add3_u32 v%d, v%d, v%d, v%d' % (T + 1, T + 1, GA + 17 + 8 * k, GA + 19 + 8 * k))]
            o += [I('v_add3_u32 v%d, v%d, v%d, v%d' % (T, T, GA + 29, GA + 31)), I('v_add_u32 v%d, v%d, v%d' % (T, T, T + 1)),
                  I('v_cmp_ne_u32 vcc, v%d, v%d' % (T, vEXP))]
            return o
        if p['nostate'] in (0, 3): add(p['gather_k'], gloads())
        seq = gcheck() + [[I('s_cbranch_vccnz L_rs' if not p['nostate'] else 's_nop 0'), I('L_rs_back:')]]
        self.tail += [I('L_rs:'), I('s_cmp_eq_u32 s%d, 0' % sSPIN), I('s_cbranch_scc1 L_rs_back'), I('s_sub_u32 s%d, s%d, 1' % (sSPIN, sSPIN))] + ([I('s_add_u32 s99, s99, 1')] if p['diag'] else []) + gloads() + gcheck() + \
                     [I('s_cbranch_vccnz L_rs'), I('s_branch L_rs_back')]
        for q in range(14, -1, -1): seq += self.cmul(GA + 2 * q, GA + 2 * q + 2, c128)
        cc, ct_ = T2 + 4, T2 + 5
        seq += [I('v_mov_b32 v%d, v%d' % (cc, GA)), I('v_mov_b32 v%d, v%d' % (ct_, GA))]
        g2r = [I('ds_read_b128 %s, v%d offset:%d' % (vr(GA + 16 * t + 4 * k, 4), aGR, 128 * t + 16 * k), deps=[gw_]) for t in range(2) for k in range(4)]
        seq += [I('v_permlane32_swap_b32 v%d, v%d' % (cc, ct_))] + g2r[:2]
        seq += self.cmul(cc, ct_, c64) + g2r[2:4]
        seq += self.cmul(vT0, cc, c32) + self.cmul(vZ0, cc, cMU) + g2r[4:6] + self.cmul(vZ1, vT0, cMU) + g2r[6:]
        for r in range(16):
            prev = [(vZ0, vZ1)[t] if r == 0 else U + 16 * t + r - 1 for t in range(2)]
            for t in range(2): seq.append(I('v_fmac_f32 v%d, v%d, v%d' % (U + 16 * t + r, cA, prev[t])))
            for t in range(2): seq.append(I('v_fmac_f32_dpp v%d, v%d, v%d %s' % (U + 16 * t + r, prev[t], cSB, DPP)))
        hw = []
        for t in range(2):
            for r in range(16): seq.append(I('v_mul_f32 v%d, v%d, v%d' % (GA + 16 * t + r, U + 16 * t + r, GA + 16 * t + r)))
            for k in range(8): seq.append(I('v_cvt_pk_bf16_f32 v%d, v%d, v%d' % (GA + 16 * t + k, GA + 16 * t + 2 * k, GA + 16 * t + 2 * k + 1)))
            for u in range(2):
                if t or u: seq.append(I('v_xor_b32 v%d, %d, v%d' % (T + 2 + u, (4 * t + u) << 4, aHS)))
                x = I('ds_write_b128 v%d, %s' % (T + 2 + u if (t or u) else aHS, vr(GA + 16 * t + 4 * u, 4))); hw.append(x); seq.append(x)
        add(p['check_k'], seq)

        mf = []; pre = {}; post = {}
        for kk in range(28):
            base = FR + (kk % 3) * 8
            for b in range(2):
                for t in ((1, 0) if kk == 0 else (0, 1)):
                    c = vr(ACC(b, 0), 16) if kk == 0 else vr(ACC(b, t), 16)
                    mf.append(I('v_mfma_f32_32x32x16_bf16 %s, %s, %s, %s' % (vr(ACC(b, t), 16), vr(base + 4 * b, 4), ar(XA(kk, t), 4), c)))
            g0 = 4 * kk
            for k in range(4): post[g0 + k] = []
            if kk & 1:
                fl = self.fill(7 + (kk >> 1) + 6); nh = len(fl) - 4
                for x in fl:
                    if x.kind == 'dma': x.deps += wr[kk]
                post[g0 + 2] += fl[:nh + 1]; post[g0 + 3] += [fl[nh + 1]]
                pend = fl[nh + 2:]
                if kk == 27: post[g0 + 3] += pend
            elif kk:
                post[g0 + 2] += [pend[0]]; post[g0 + 3] += [pend[1]]
            if kk + 2 < 28:
                wr[kk + 2] = wreads(kk + 2)
                post[g0] += wr[kk + 2][:2]; post[g0 + 1] += wr[kk + 2][2:]
        left = self.weave(mf, pre, post, V, budget=p['bF'])
        self.seq += self.stamp()
        self.seq += [x for _, x in left]
        self.seq += self.stamp()

        sreadsP = {}
        def preads(n):
            F = 21 + n; slot = F % 6; o = []
            for u in range(8):
                a = FIFO + ((8 * n + u) % NFIFO) * 4
                if n % 3 == 0:
                    o.append([I('ds_read_b128 %s, v%d offset:%d' % (ar(a, 4), aC + u, slot * 4096))])
                else:
                    reg = u >> 1; off = (reg & 1) * RING + slot * 4096 + (u & 1) * 1024
                    o.append([I('ds_read_b64_tr_b16 %s, v%d offset:%d' % (ar(a + 2 * h, 2), aW2 + (reg >> 1), off + 512 * h)) for h in range(2)])
            if p['nord2'] and n > 0: o = [y[:0] if p['nord2'] == 1 else y[:1] for y in o]
            sreadsP[n] = [x for y in o for x in y]
            return o
        def stage_open(n, extra=()):
            deps = list(self.fills[21 + n]) + (sreadsP[n - 1] if n else []) + list(extra)
            o = [I('s_barrier' if not (p['nobar2'] and n) else 's_nop 0', deps=deps)]
            fl = self.fill(21 + n + 5) if (n >= 1 and n + 5 < 21) else []
            if p['nodma2'] and fl: self.fills[21 + n + 5] = []; fl = []
            return o, fl

        A0 = len(p['a0'])
        gel = []
        TT = T2 + 1 if (T2 + 1) % 2 == 0 else T2
        OO = (FR, FR + 4)
        cnt = 0
        for b in range(2):
            for u in range(2):
                for t in range(2):
                    v = ACC(b, t) + 8 * u; o = OO[cnt & 1]; blk = []
                    pr = lambda x, k: vr(x + 2 * k, 2)
                    for k in range(4): blk.append(I('v_pk_mul_f32 %s, %s, %s' % (pr(TT, k), pr(v, k), pr(v, k))))
                    for k in range(4): blk.append(I('v_pk_fma_f32 %s, %s, %s, %s op_sel:[0,0,1] op_sel_hi:[1,0,1]' % (pr(TT, k), pr(TT, k), vr(vGC, 2), vr(vGC, 2))))
                    for k in range(4): blk.append(I('v_pk_mul_f32 %s, %s, %s' % (pr(TT, k), pr(v, k), pr(TT, k))))
                    for k in range(8): blk.append(I('v_exp_f32 v%d, v%d' % (TT + k, TT + k)))
                    for k in range(4): blk.append(I('v_pk_fma_f32 %s, %s, %s, %s op_sel:[0,%d,%d] op_sel_hi:[1,%d,%d]' % (pr(TT, k), pr(TT, k), vr(vIG, 2), vr(vIG, 2), t, t, t, t)))
                    for k in range(8): blk.append(I('v_rcp_f32 v%d, v%d' % (TT + k, TT + k)))
                    for k in range(4): blk.append(I('v_pk_mul_f32 %s, %s, %s' % (pr(TT, k), pr(v, k), pr(TT, k))))
                    for k in range(4): blk.append(I('v_cvt_pk_bf16_f32 v%d, v%d, v%d' % (o + k, TT + 2 * k, TT + 2 * k + 1)))
                    x = I('ds_write_b128 v%d, %s offset:%d' % (aHW, vr(o, 4), ((b * 2 + u) * 2 + t) * 1024)); hw.append(x); blk.append(x)
                    gel.append(blk); cnt += 1
        himg = [I('ds_read_b64_tr_b16 %s, v%d offset:%d' % (ar(HFR + 4 * m + 2 * h, 2), aHI, m * 2048 + 512 * h)) for m in range(8) for h in range(2)]
        nopen = 0
        for i, blk in enumerate(gel):
            extra = []
            if i in p['a0']:
                b_, fl = stage_open(nopen, hw[:4] if nopen == 0 else ())
                extra = b_ + fl + [x for y in preads(nopen) for x in y] + (himg if nopen == 0 else [])
                nopen += 1
            step = max(1, len(blk) // (len(extra) + 1)); k = 0
            for n_, x in enumerate(blk):
                self.seq.append(x)
                if k < len(extra) and (n_ + 1) % step == 0: self.seq.append(extra[k]); k += 1
            self.seq += extra[k:]
        self.seq += self.stamp()
        if nopen == 0:
            b_, fl = stage_open(0, hw); self.seq += b_; first = [x for y in preads(0) for x in y]
            self.seq += himg[:4] + first[:2] + himg[4:8] + first[2:4] + himg[8:] + first[4:]; nopen = 1
        else:
            e('s_barrier', deps=hw)
        hfr = [I('ds_read_b128 %s, v%d offset:%d' % (ar(HFR + 32 + 4 * k, 4), aHR, k * 2048)) for k in range(16)]
        e('v_mov_b32 v%d, 0xfffefffe' % vMSK)
        self.seq += self.stamp()

        mf = []; pre = {}; post = {}
        for g_ in range(7):
            for k in range(24):
                i = 24 * g_ + k; acc = P2[g_ & 1]
                mf.append(I('v_mfma_f32_32x32x16_bf16 %s, %s, %s, %s' % (vr(acc, 16), ar(FIFO + (i % NFIFO) * 4, 4), ar(HFR + 4 * k, 4), '0' if k == 0 else vr(acc, 16))))
                post[i] = []
        for k in range(8): post[k] += hfr[2 * k:2 * k + 2]
        lead = p['lead']; last = 8 * 20 - lead
        rem = list(range(nopen, 21))
        for idx, n in enumerate(rem):
            pos = max(0, min(8 * n - lead, int(round(idx * last / max(1, len(rem) - 1))))) if A0 else max(0, 8 * n - lead)
            pos = max(pos, 8 * n + 8 - NFIFO)
            b_, fl = stage_open(n); rds = preads(n)
            post[pos] += b_
            nh = len(fl) - 4
            flat = [x for y in rds for x in y]; rpg = p['rpg'] if n % 3 else 2
            for q, x in enumerate(flat): post[pos + q // rpg] += [x]
            if fl:
                k0 = pos + (len(flat) + rpg - 1) // rpg
                at = [pos + x for x in p['dgap']]
                post[at[0]] += fl[:nh + 1]
                for q in range(1, 4): post[at[q]] += [fl[nh + q]]
        V = []
        seq = [I('ds_read_b128 %s, v%d offset:%d' % (vr(RAW + 8 + 4 * k, 4), aDE, 16 * (k & 1) + 128 * (k >> 1))) for k in range(4)]
        V += [(12, x) for x in seq]
        def publish(n):
            acc = P2[n & 1]; pk = PK[n & 1]; o = []
            o += [I('s_add_u32 s%d, s%d, 1' % (sT2, sT2)), [I('s_cmp_eq_u32 s%d, 7' % sT2), I('s_cselect_b32 s%d, 0, s%d' % (sT2, sT2))],
                  I('s_mul_i32 s%d, s%d, 57344' % (sT3, sT2)), I('s_add_u32 s%d, s%d, s%d' % (sT3, sT3, sPUB))]
            for q in range(2):
                for k in range(4 * q, 4 * q + 4): o.append(I('v_cvt_pk_bf16_f32 v%d, v%d, v%d' % (pk + k, acc + 2 * k, acc + 2 * k + 1), tag=('cvt', n)))
                for k in range(4 * q, 4 * q + 4): o.append(I('v_and_or_b32 v%d, v%d, v%d, s%d' % (pk + k, pk + k, vMSK, sTG[k & 3])))
                if not p['nopub']:
                    o.append(I('buffer_store_dwordx4 %s, v%d, %s, s%d offen offset:%d %s' % (vr(pk + 4 * q, 4), vL16, sr(SIN, 4), sT3, q * 1024, p['stflag'])))
            return o
        base = []
        for k in range(8):
            x, d, b = XRAW + k, RAW + 8 + k, RAW + 16 + k; s0 = SUM + 2 * k
            base += [I('v_lshlrev_b32 v%d, 16, v%d' % (T, x)), I('v_and_b32 v%d, 0xffff0000, v%d' % (T + 1, x)),
                     I('v_lshlrev_b32 v%d, 16, v%d' % (T + 2, d)), I('v_and_b32 v%d, 0xffff0000, v%d' % (T + 3, d)),
                     I('v_mul_f32 v%d, v%d, v%d' % (T, T, T + 2)), I('v_mul_f32 v%d, v%d, v%d' % (T + 1, T + 1, T + 3)),
                     I('v_lshlrev_b32 v%d, 16, v%d' % (s0, b)), I('v_cvt_pk_bf16_f32 v%d, v%d, v%d' % (T, T, T + 1)),
                     I('v_and_b32 v%d, 0xffff0000, v%d' % (s0 + 1, b)), I('v_mul_f32 v%d, v%d, v%d' % (s0, vGM, s0)),
                     I('v_and_b32 v%d, 0xffff0000, v%d' % (T + 1, T)), I('v_lshlrev_b32 v%d, 16, v%d' % (T, T)),
                     I('v_mul_f32 v%d, v%d, v%d' % (s0 + 1, vGM, s0 + 1)),
                     I('v_fmac_f32 v%d, v%d, v%d' % (s0, vG, T)), I('v_fmac_f32 v%d, v%d, v%d' % (s0 + 1, vG, T + 1))]
        sSRC = sTAB
        def ploads(n):
            return [I('buffer_load_dwordx4 %s, v%d, %s, s%d offen offset:%d %s' % (vr(PIN + 8 * n + 4 * q, 4), vL16, sr(SIN, 4), sSRC[n], q * 1024, p['ldflag'])) for q in range(2)]
        def pcheck(n):
            r = PIN + 8 * n
            o = [I('v_xor_b32 v%d, s%d, v%d' % (T + 4, sTG[0], r))]
            o += [I('v_bitop3_b32 v%d, v%d, v%d, s%d bitop3:0xf6' % (T + 4, T + 4, r + k, sTG[k & 3])) for k in range(1, 8)]
            return o + [I('v_and_b32 v%d, 0x10001, v%d' % (T + 4, T + 4)), I('v_cmp_ne_u32 vcc, 0, v%d' % (T + 4))]
        def pacc(n):
            r = PIN + 8 * n
            o = pcheck(n) + [[I('s_cbranch_vccnz L_rp%d' % n if not p['nopub'] else 's_nop 0'), I('L_rp%d_back:' % n)]]
            self.tail += [I('L_rp%d:' % n), I('s_cmp_eq_u32 s%d, 0' % sSPIN), I('s_cbranch_scc1 L_rp%d_back' % n), I('s_sub_u32 s%d, s%d, 1' % (sSPIN, sSPIN))] + ploads(n) + pcheck(n) + \
                         [I('s_cbranch_vccnz L_rp%d' % n), I('s_branch L_rp%d_back' % n)]
            for k in range(8):
                o.append(I('v_dot2c_f32_bf16 v%d, s%d, v%d' % (SUM + 2 * k, sLO, r + k)))
            for k in range(8):
                o.append(I('v_dot2c_f32_bf16 v%d, s%d, v%d' % (SUM + 2 * k + 1, sHI, r + k)))
            return o
        srcs = [I('s_mul_i32 s%d, s%d, 57344' % (sT1, sS)), I('s_lshl_b32 s%d, s%d, 11' % (sXO, sW)), I('s_add_u32 s%d, s%d, s%d' % (sT1, sT1, sXO)),
                I('s_mov_b32 s%d, s%d' % (sBO, sS))]
        for n in range(6):
            srcs += [[I('s_sub_u32 s%d, s%d, 1' % (sBO, sBO)), I('s_cselect_b32 s%d, 6, s%d' % (sBO, sBO))],
                     I('s_lshl_b32 s%d, s%d, 13' % (sXO, sBO)), I('s_add_u32 s%d, s%d, s%d' % (sSRC[n], sXO, sT1))]
        if p['outlds']:
            srcs += [I(x) for x in (
                'v_and_b32 v%d, 3, v%d' % (T, vL), 'v_bfe_u32 v%d, v%d, 2, 1' % (T + 1, vL), 'v_bfe_u32 v%d, v%d, 3, 2' % (T + 2, vL),
                'v_lshl_add_u32 v%d, v%d, 2, v%d' % (T + 3, T + 1, T), 'v_lshl_add_u32 v%d, v%d, 4, v%d' % (T, T + 1, T),
                'v_lshl_add_u32 v%d, v%d, 2, v%d' % (T, T + 2, T), 'v_lshrrev_b32 v%d, 5, v%d' % (T + 1, vL),
                'v_lshlrev_b32 v%d, 2, v%d' % (T + 1, T + 1), 'v_xor_b32 v%d, v%d, v%d' % (T + 3, T + 3, T + 1),
                'v_lshlrev_b32 v%d, 4, v%d' % (T + 3, T + 3), 'v_lshl_add_u32 v%d, v%d, 7, v%d' % (T, T, T + 3),
                's_lshl_b32 s%d, s%d, 12' % (sXO, sW), 's_add_u32 s%d, s%d, %d' % (sXO, sXO, XH), 'v_add_u32 v%d, s%d, v%d' % (aOW, sXO, T),
                'v_bfe_u32 v%d, v%d, 3, 2' % (T, vL), 'v_lshlrev_b32 v%d, 4, v%d' % (T, T), 'v_xor_b32 v%d, v%d, v%d' % (T, T, vL16),
                'v_add_u32 v%d, s%d, v%d' % (aOR, sXO, T))]
        V += [(14, x) for x in srcs]
        ev = []
        for n in range(1, 7): ev.append((24 * n + p['pubgap'], 0, publish(n - 1)))
        for n in range(1, 5): ev.append((24 * n + 8, 1, base[30 * (n - 1):30 * n]))
        for k in range(6):
            if p['pl'][k] < 168: ev.append((p['pl'][k], 2, ploads(k)))
            if p['pc'][k] < 168: ev.append((p['pc'][k], 3, pacc(k)))
        for g_, _, lst in sorted(ev, key=lambda t: t[:2]): V += [(g_, x) for x in lst]
        left = self.weave(mf, pre, post, V, budget=p['bP'])
        self.seq += [x for _, x in left]
        for n in range(5):
            lastc = max(i for i, x in enumerate(self.seq) if x.tag == ('cvt', n))
            assert lastc < [i for i, x in enumerate(self.seq) if x is mf[24 * (n + 2)]][0]
        self.seq += self.stamp()
        for k in range(6):
            if p['pl'][k] >= 168: self.seq += ploads(k)
        for k in range(6):
            if p['pc'][k] >= 168:
                for x in pacc(k): self.seq += x if isinstance(x, list) else [x]
        self.seq += self.stamp()
        for q in range(4):
            for k in range(2):
                e('v_pk_add_f32 %s, %s, %s' % (vr(SUM + 4 * q + 2 * k, 2), vr(SUM + 4 * q + 2 * k, 2), vr(P2[0] + 4 * q + 2 * k, 2)))
            if not p['outlds']:
                e('buffer_store_dwordx4 %s, v%d, %s, 0 offen offset:%d %s' % (vr(SUM + 4 * q, 4), vOUT, sr(SOUT, 4), 16 * q, p['outflag']))
            else:
                if q: e('v_xor_b32 v%d, %d, v%d' % (T + q, 16 * q, aOW))
                ow = e('ds_write_b128 v%d, %s' % (T + q if q else aOW, vr(SUM + 4 * q, 4)))
        if p['outlds']:
            e('v_xor_b32 v%d, 64, v%d' % (T, aOR))
            for q in range(4): e('ds_read_b128 %s, v%d offset:%d' % (vr(P2[0] + 4 * q, 4), aOR if q < 2 else T, 1024 * q), deps=[ow])
            for q in range(4):
                if q: e('s_mov_b32 s%d, %d' % (sT0, q * 8 * 1792))
                e('buffer_store_dwordx4 %s, v%d, %s, %s offen %s' % (vr(P2[0] + 4 * q, 4), vOUT, sr(SOUT, 4), 's%d' % sT0 if q else '0', p['outflag']))
        e('s_sub_u32 s%d, s%d, 31\ns_or_b32 s%d, s%d, s%d\ns_or_b32 s%d, s%d, s%d\ns_cbranch_scc1 L_fin' % (sT0, sR, sT0, sT0, sS, sT0, sT0, sW))
        e('v_mov_b32 v%d, s%d\nv_mov_b32 v%d, 0\ns_mov_b64 exec, 1' % (T, sNONCE, T + 1))
        e('global_store_dword v%d, v%d, s[36:37] sc1' % (T + 1, T))
        e('s_mov_b64 exec, -1')
        e('L_fin:')
        if p['diag']:
            e('s_waitcnt vmcnt(0)')
            self.seq += self.stamp()
            e('s_memrealtime s[0:1]\ns_waitcnt lgkmcnt(0)')
            lst = [98, 100] + self.STAMPS[:self.nstamp] + [0]
            if p.get('enc'):
                i_, j_, wg = p['enc']; st = [98] + self.STAMPS
                e('s_sub_u32 s%d, s2, %d\ns_or_b32 s%d, s%d, s%d\ns_cbranch_scc1 L_exit' % (sT0, wg, sT0, sT0, sW))
                e('s_sub_u32 s%d, s%d, s%d' % (sT1, st[j_], st[i_]))
                e('L_enc:\ns_memrealtime s[2:3]\ns_waitcnt lgkmcnt(0)\ns_sub_u32 s2, s2, s0\ns_cmp_lt_u32 s2, s%d\ns_cbranch_scc1 L_enc\ns_endpgm' % sT1)
            e('s_lshl_b32 s%d, s2, 2\ns_add_u32 s%d, s%d, s%d\ns_lshl_b32 s%d, s%d, 6\ns_add_u32 s%d, s%d, %d' % (sT0, sT0, sT0, sW, sT0, sT0, sT0, sT0, WS_DIAG))
            for k, r in enumerate(lst): e('v_mov_b32 v%d, s%d' % (64 + k, r))
            e('v_mov_b32 v78, s99\nv_mov_b32 v%d, s%d\nv_mov_b32 v%d, s%d\ns_mov_b64 exec, 1' % (79, sSPIN, T, sT0))
            for q in range(4): e('global_store_dwordx4 v%d, %s, s[36:37] offset:%d' % (T, vr(64 + 4 * q, 4), 16 * q))
        e('L_exit:\ns_endpgm')

    def helper(self):
        g = Gen(); e = g.e
        e('L_helper:')
        e('s_and_b32 s%d, s%d, 3\ns_lshl_b32 s%d, s%d, 2\ns_add_u32 s%d, s%d, s%d' % (sT0, sT0, sT0, sT0, sT0, sT0, sW))
        e('s_mul_i32 s%d, s%d, 3' % (sT1, sT1))
        e('s_getpc_b64 s[38:39]\nL_pc:')
        e('s_sub_u32 s38, s38, L_pc-%s\ns_subb_u32 s39, s39, 0' % KNAME)
        e('v_lshl_add_u32 v2, s%d, 6, v%d\nv_lshlrev_b32 v3, 7, v2\nv_min_u32 v3, L_end-%s-4, v3' % (sT0, vL, KNAME))
        e('global_load_dword v10, v3, s[38:39]')
        e('s_waitcnt lgkmcnt(0)')
        if self.p['hwait']: e('s_waitcnt vmcnt(0)')
        e('v_lshrrev_b32 v4, 4, v2\nv_and_b32 v5, 15, v2\nv_mul_u32_u24 v4, 3584, v4\nv_lshl_add_u32 v4, v5, 7, v4')
        e('s_lshl_b32 s%d, s%d, 9\nv_add_u32 v4, s%d, v4' % (sT2, sT1, sT2))
        for k in range(7):
            e('global_load_dword v%d, v4, s[24:25]' % (11 + k))
            if k < 6: e('v_add_u32 v4, %d, v4' % (64 * 3584))
        e('v_lshrrev_b32 v6, 2, v2\nv_and_b32 v5, 3, v2\nv_lshlrev_b32 v5, 7, v5\ns_lshl_b32 s%d, s%d, 7\nv_add_u32 v5, s%d, v5' % (sT2, sT1, sT2))
        e('v_add_u32 v7, 256, v6\nv_min_u32 v7, 447, v7\nv_mul_u32_u24 v6, 896, v6\nv_mul_u32_u24 v7, 896, v7\nv_add_u32 v6, v6, v5\nv_add_u32 v7, v7, v5')
        e('s_mul_i32 s%d, s%d, %d\nv_lshlrev_b32 v8, 7, v2\nv_add_u32 v8, s%d, v8' % (sT2, sT1, 256 * 896, sT2))
        e('s_waitcnt vmcnt(0)')
        e('global_load_dword v10, v6, s[14:15]\nglobal_load_dword v11, v6, s[16:17]\nglobal_load_dword v12, v7, s[14:15]\nglobal_load_dword v13, v7, s[16:17]')
        for k in range(7):
            e('global_load_dword v%d, v8, s[28:29]' % (14 + k))
            if k < 6: e('v_add_u32 v8, %d, v8' % (1024 * 128))
        e('s_waitcnt vmcnt(0)\ns_endpgm')
        return g.seq

    def text(self):
        self.build()
        main = finish(self.seq)
        out = []; zb = None
        for k, x in enumerate(main):
            if x.tag == 'zbeg': zb = k
            if x.tag == 'zend': ze = k
        zalt = []
        for w in range(1, 4):
            zalt.append('L_z%d:' % w)
            zalt += [(x.alt[w] if x.alt else x.text) for x in main[zb + 1:ze]]
            zalt.append('s_branch L_zend')
        tail = []
        blk = []
        for x in self.tail:
            if x.kind == 'label' and blk: tail += finish([I('s_waitcnt vmcnt(0)')][:0] + blk); blk = []
            blk.append(x)
        tail += finish(blk)
        body = [x.text for x in main] + zalt + [x.text for x in tail]
        if self.p['helper']: body += [x.text for x in finish(self.helper())]
        body.append('L_end:')
        hdr = open('gated_mix__ssm_conv_s5__dense_activation_gelu__prompt.s.ref').read().split('; Override launch')[0]
        o = hdr + '; @launch grid=(256,1,1) block=(256,1,1) lds=%d\n' % LDS_BYTES
        o += '.amdgcn_target "amdgcn-amd-amdhsa--gfx950"\n.text\n.globl %s\n.p2align 8\n.type %s,@function\n%s:\n' % (KNAME, KNAME, KNAME)
        o += '\n'.join(('' if t.endswith(':') else '    ') + t for t in body) + '\n'
        o += '.section .rodata,"a"\n.p2align 6\n.amdhsa_kernel %s\n  .amdhsa_next_free_vgpr 512\n  .amdhsa_next_free_sgpr 102\n  .amdhsa_accum_offset 256\n' % KNAME
        o += '  .amdhsa_group_segment_fixed_size 0\n  .amdhsa_kernarg_size 144\n  .amdhsa_user_sgpr_count 2\n  .amdhsa_user_sgpr_kernarg_segment_ptr 1\n  .amdhsa_system_sgpr_workgroup_id_x 1\n.end_amdhsa_kernel\n'
        return o

if __name__ == '__main__':
    kw = json.loads(sys.argv[2]) if len(sys.argv) > 2 else {}
    open(sys.argv[1], 'w').write(Gen(**kw).text())
```
